```python
import torch

def _softmax(x, axis=-1):
    return torch.softmax(x, dim=axis)

def _gelu(x):
    return torch.nn.functional.gelu(x, approximate='tanh')

def _silu(x):
    return torch.nn.functional.silu(x)

def _sigmoid(x):
    return torch.sigmoid(x)

def _layernorm(x, axis=-1, eps=1e-05):
    m = x.mean(dim=axis, keepdim=True)
    v = x.var(dim=axis, keepdim=True, unbiased=False)
    return (x - m) / torch.sqrt(v + eps)

def _scatter_add(tgt, idx, src, axis=0):
    return tgt.clone().index_add_(axis, idx, src)

def _segment_sum(src, seg, n):
    out = torch.zeros((n,) + src.shape[1:], dtype=src.dtype)
    return out.index_add_(0, seg, src)

def _pad(x, pw):
    flat = tuple((v for pair in reversed(pw) for v in pair))
    return torch.nn.functional.pad(x, flat)
kernel_name = 'standalone__video_timesformer__vision'

def setup_inputs():

    _w = lambda a: (lambda t: t.to(torch.bfloat16) if t.is_floating_point() else t)(torch.as_tensor(a))
    T = 8
    p = 16
    HW = 512 // p * p
    N = (HW // p) ** 2
    C = 192
    return {'x': _w((lambda *s: torch.randn(*s, dtype=torch.bfloat16) * 0.1)(1, T, N, C)), 'wqkv_t': _w((lambda *s: torch.randn(*s, dtype=torch.bfloat16) * 0.1)(C, 3 * C)), 'wo_t': _w((lambda *s: torch.randn(*s, dtype=torch.bfloat16) * 0.1)(C, C)), 'wqkv_s': _w((lambda *s: torch.randn(*s, dtype=torch.bfloat16) * 0.1)(C, 3 * C)), 'wo_s': _w((lambda *s: torch.randn(*s, dtype=torch.bfloat16) * 0.05)(C, C))}

def reference(x, wqkv_t, wo_t, wqkv_s, wo_s):
    B, T, N, C = x.shape
    scale = C ** (-0.5)
    xt = (lambda x, *d: x.permute(*d))(x, 0, 2, 1, 3).reshape(B * N, T, C)
    h = _layernorm(xt, axis=-1)
    qkv = h @ wqkv_t
    q, k, v = (qkv[..., :C].clone(), qkv[..., C:2 * C].clone(), qkv[..., 2 * C:].clone())
    a = _softmax(torch.einsum('btc,bsc->bts', q, k) * scale, axis=-1)
    xt = xt + torch.einsum('bts,bsc->btc', a, v) @ wo_t
    x1 = (lambda x, *d: x.permute(*d))(xt.reshape(B, N, T, C), 0, 2, 1, 3)
    xs = x1.reshape(B * T, N, C)
    h = _layernorm(xs, axis=-1)
    qkv = h @ wqkv_s
    q, k, v = (qkv[..., :C].clone(), qkv[..., C:2 * C].clone(), qkv[..., 2 * C:].clone())
    a = _softmax(torch.einsum('bnc,bmc->bnm', q, k) * scale, axis=-1)
    xs = xs + torch.einsum('bnm,bmc->bnc', a, v) @ wo_s
    return xs.reshape(B, T, N, C)
```

```python
import re, struct

def fbits(x):
    return "0x%08x" % struct.unpack("<I", struct.pack("<f", x))[0]

def vr(r, n=1, p="v"):
    return f"{p}{r}" if n == 1 else f"{p}[{r}:{r+n-1}]"
def ar(r, n=1): return vr(r, n, "a")
def sr(r, n=1): return vr(r, n, "s")

_reg_re = re.compile(r"^(-|\|)?([vas])(\d+)\|?$")
_rng_re = re.compile(r"^(-|\|)?([vas])\[(\d+):(\d+)\]\|?$")

def regs_of(tok):
    tok = tok.strip()
    m = _reg_re.match(tok)
    if m: return {(m.group(2), int(m.group(3)))}
    m = _rng_re.match(tok)
    if m: return {(m.group(2), i) for i in range(int(m.group(3)), int(m.group(4)) + 1)}
    if tok == "vcc": return {("s", 106), ("s", 107)}
    if tok == "vcc_lo": return {("s", 106)}
    if tok == "vcc_hi": return {("s", 107)}
    if tok == "exec": return {("s", 126), ("s", 127)}
    if tok == "m0": return {("s", 124)}
    if tok == "scc": return set()
    return set()

TRANS = ("v_exp_f32", "v_log_f32", "v_rcp_f32", "v_rsq_f32", "v_sqrt_f32", "v_sin_f32", "v_cos_f32", "v_rcp_iflag_f32")
NODST_S = ("s_cmp", "s_waitcnt", "s_barrier", "s_nop", "s_cbranch", "s_branch", "s_endpgm", "s_setprio", "s_bitcmp", "s_sleep")

class Ins:
    __slots__ = ("text", "op", "ops", "mods", "rd", "wr", "cls", "tag", "passes", "srcC", "srcAB", "dpp", "is_label",
                 "need_vm", "lds_dma", "idx", "ws", "noauto", "comment")
    def __init__(s):
        s.tag = None; s.passes = 0; s.srcC = set(); s.srcAB = set(); s.dpp = False; s.is_label = False
        s.need_vm = None; s.lds_dma = False; s.rd = set(); s.wr = set(); s.cls = "other"; s.ws = 1; s.noauto = False
        s.comment = False; s.op = ""; s.ops = []; s.mods = ""

def parse(text):
    I = Ins(); I.text = text
    t = text.split(";")[0].strip()
    if not t:
        I.comment = True; I.ws = 0; return I
    if t.endswith(":"):
        I.is_label = True; I.ws = 0; I.cls = "label"; return I
    sp = t.split(None, 1)
    op = sp[0]; I.op = op
    rest = sp[1] if len(sp) > 1 else ""
    parts = [p.strip() for p in re.split(r",(?![^\[]*\])", rest)] if rest else []
    mods = ""
    if parts:
        lp = parts[-1].split(None, 1)
        parts[-1] = lp[0]
        if len(lp) > 1: mods = lp[1]
    I.ops = parts; I.mods = mods
    R = lambda k: regs_of(parts[k]) if k < len(parts) else set()
    allfrom = lambda k: set().union(*[regs_of(p) for p in parts[k:]]) if len(parts) > k else set()
    if op.startswith("v_mfma"):
        I.cls = "mfma"
        I.passes = 8 if "32x32" in op else 4
        I.wr = R(0); I.srcAB = R(1) | R(2); I.srcC = R(3); I.rd = I.srcAB | I.srcC
    elif op.startswith("v_"):
        I.cls = "valu"
        base = op.replace("_e32", "").replace("_e64", "").replace("_dpp", "").replace("_sdwa", "")
        if base in TRANS: I.cls = "trans"
        if base.startswith("v_dot"): I.cls = "dot"
        I.dpp = ("quad_perm" in mods or "row_" in mods or "wave_" in mods)
        if base.startswith("v_cmpx"):
            I.wr = regs_of("exec") | R(0); I.rd = allfrom(1)
        elif base.startswith("v_cmp"):
            I.wr = R(0); I.rd = allfrom(1)
        elif base.startswith("v_permlane") and "swap" in base:
            I.wr = R(0) | R(1); I.rd = R(0) | R(1); I.cls = "permlane"
        elif base in ("v_add_co_u32", "v_sub_co_u32", "v_addc_co_u32", "v_subb_co_u32", "v_subrev_co_u32"):
            I.wr = R(0) | R(1); I.rd = allfrom(2)
        else:
            I.wr = R(0); I.rd = allfrom(1)
            if base.startswith(("v_fmac", "v_mac", "v_dot2c", "v_pk_fmac", "v_writelane")): I.rd |= R(0)
            if base == "v_cndmask_b32" and len(parts) == 3: I.rd |= regs_of("vcc")
            if I.dpp:
                I.rd |= R(0) if False else set()
        if base in ("v_readfirstlane_b32", "v_readlane_b32"): I.cls = "readlane"
    elif op.startswith("ds_"):
        I.cls = "ds"
        if op.startswith(("ds_read", "ds_bpermute", "ds_permute", "ds_swizzle")):
            I.wr = R(0); I.rd = allfrom(1)
            if "addtid" in op: I.rd |= regs_of("m0")
        else:
            I.rd = allfrom(0)
            if "addtid" in op: I.rd |= regs_of("m0")
    elif op.startswith(("buffer_", "global_")):
        I.cls = "vmem"
        is_lds = bool(re.search(r"\blds\b", mods)) or "load_lds" in op
        if "store" in op:
            I.rd = allfrom(0); I.cls = "vstore"
        elif is_lds:
            I.rd = allfrom(0) | regs_of("m0"); I.lds_dma = True
        else:
            I.wr = R(0); I.rd = allfrom(1)
            if "d16" in op: I.rd |= R(0)
    elif op.startswith("s_"):
        I.cls = "salu"
        if op == "s_nop":
            I.ws = int(parts[0], 0) + 1; I.cls = "nop"
        elif op.startswith("s_load") or op.startswith("s_buffer_load"):
            I.cls = "smem"; I.wr = R(0); I.rd = allfrom(1)
        elif op.startswith(NODST_S):
            I.rd = allfrom(0)
            if op.startswith("s_waitcnt"): I.cls = "wait"
            if op.startswith(("s_cbranch", "s_branch", "s_endpgm")): I.cls = "branch"
        else:
            I.wr = R(0); I.rd = allfrom(1)
            if op in ("s_addk_i32", "s_mulk_i32"): I.rd |= R(0)
    else:
        raise ValueError("unknown instr: " + text)
    return I

VALUISH = ("valu", "trans", "dot", "permlane", "readlane")

class Asm:
    def __init__(s):
        s.ins = []
        s.nlab = 0
        s.tag = None
    def I(s, text, noauto=False):
        last = None
        for ln in text.split("\n"):
            ln = ln.strip()
            if not ln: continue
            I = parse(ln); I.tag = s.tag; I.noauto = noauto
            s.ins.append(I); last = I
        return last
    __call__ = I
    def c(s, txt): s.I("; " + txt)
    def label(s, name): s.I(name + ":")
    def newlab(s, p="L"):
        s.nlab += 1; return f"{p}_{s.nlab}"
    def wait_vm(s, handle):
        I = Ins(); I.cls = "waitvm"; I.need_vm = handle; I.tag = s.tag; I.ws = 0; I.text = "; wait_vm"
        s.ins.append(I)
    def wait_lgkm0(s): s.I("s_waitcnt lgkmcnt(0)")
    def begin(s, tag):
        assert s.tag is None
        s.tag = tag
        I = Ins(); I.cls = "cbegin"; I.ws = 0; I.text = "; reset"; s.ins.append(I)
    def end(s):
        s.tag = None
        I = Ins(); I.cls = "cend"; I.ws = 0; I.text = "; reset"; s.ins.append(I)
    def reset(s):
        I = Ins(); I.cls = "reset"; I.ws = 0; I.text = "; reset"; s.ins.append(I)

    def finalize(s, verbose=False):
        out = []
        vmq = []
        lgq = []
        smem_pending = set()
        stats = {"nops": 0, "waits": 0}
        def emit(I):
            out.append(I)
        def mk(text):
            I = parse(text); return I
        def count_after(q, X):
            k = q.index(X)
            return sum(1 for Y in q[k+1:] if Y.tag is None or Y.tag == X.tag)
        def vm_count_after(X): return count_after(vmq, X)
        def retire_upto(q, n):
            last = None
            for X in q:
                if count_after(q, X) >= n: last = X
            if last is not None: del q[:q.index(last)+1]
        saved = None
        def do_wait(vm=None, lg=None):
            parts = []
            if vm is not None: parts.append(f"vmcnt({min(vm,63)})")
            if lg is not None: parts.append(f"lgkmcnt({min(lg,15)})")
            emit(mk("s_waitcnt " + " ".join(parts))); stats["waits"] += 1
        def retire_vm(X):
            k = vmq.index(X); del vmq[:k+1]
        def retire_lg(X):
            k = lgq.index(X); del lgq[:k+1]
        def dist_back(pred, maxd):
            d = 0
            for P in reversed(out):
                if d >= maxd: break
                if P.ws > 0 or P.is_label:
                    yield P, d
                d += P.ws
        for I in s.ins:
            if I.cls == "reset":
                vmq.clear(); lgq.clear(); smem_pending.clear(); continue
            if I.cls == "cbegin":
                saved = (list(vmq), list(lgq), set(smem_pending)); continue
            if I.cls == "cend":
                sv, sl, ss = saved
                vmq[:] = sv + [X for X in vmq if X not in sv]
                lgq[:] = sl + [X for X in lgq if X not in sl]
                smem_pending |= ss; saved = None; continue
            if I.cls == "waitvm":
                X = I.need_vm
                if X in vmq:
                    do_wait(vm=vm_count_after(X)); retire_vm(X)
                continue
            if I.comment or I.is_label:
                emit(I); continue
            if I.cls == "wait":
                m = re.search(r"vmcnt\((\d+)\)", I.text)
                if m:
                    n = int(m.group(1))
                    retire_upto(vmq, n)
                m = re.search(r"lgkmcnt\((\d+)\)", I.text)
                if m:
                    n = int(m.group(1))
                    if n == 0: smem_pending.clear()
                    retire_upto(lgq, n)
                emit(I); continue
            touched = I.rd | I.wr
            if not I.noauto:
                needvm = None; needlg = None
                for X in vmq:
                    if X.wr & touched: needvm = X
                for X in lgq:
                    if X.wr & touched: needlg = X
                if touched & smem_pending:
                    do_wait(lg=0); smem_pending.clear(); lgq.clear(); needlg = None
                vmn = lgn = None
                if needvm is not None: vmn = vm_count_after(needvm)
                if needlg is not None: lgn = count_after(lgq, needlg)
                if vmn is not None or lgn is not None:
                    do_wait(vm=vmn, lg=lgn)
                    if needvm is not None: retire_vm(needvm)
                    if needlg is not None: retire_lg(needlg)
            need = 0
            isv = I.cls in VALUISH
            vrd = {r for r in I.rd if r[0] in "va"}; vwr = {r for r in I.wr if r[0] in "va"}
            srd = {r for r in I.rd if r[0] == "s"}
            for P, d in dist_back(None, 21):
                req = 0
                if P.is_label: continue
                pv = P.cls in VALUISH
                pvw = {r for r in P.wr if r[0] in "va"}; psw = {r for r in P.wr if r[0] == "s"}
                if P.cls == "mfma":
                    big = 12 if P.passes == 8 else 8
                    ov = 10 if P.passes == 8 else 6
                    if I.cls == "mfma":
                        if P.wr & I.srcAB: req = max(req, big)
                        if P.wr & I.srcC:
                            if not (P.wr == I.srcC and P.passes == I.passes): req = max(req, ov)
                        if (P.wr & I.wr) and not (P.wr == I.srcC and P.wr == I.wr): req = max(req, big)
                    else:
                        if P.wr & (vrd | vwr): req = max(req, big)
                        if isv and (P.srcC & vwr): req = max(req, 7 if P.passes == 8 else 3)
                if pv:
                    if I.cls == "mfma" and (pvw & vrd): req = max(req, 2)
                    if I.cls == "mfma" and (("s", 126) in psw): req = max(req, 4)
                    if I.cls in ("vmem", "vstore") and (psw & srd): req = max(req, 5)
                    if isv and (psw & srd): req = max(req, 2)
                    if I.cls == "readlane" and (psw & srd): req = max(req, 4)
                    if isv and I.dpp and (pvw & vrd): req = max(req, 2)
                    if isv and I.dpp and (("s", 126) in psw): req = max(req, 5)
                    if I.cls == "permlane" and (pvw & vrd): req = max(req, 2)
                    if I.cls == "readlane" and (pvw & vrd): req = max(req, 1)
                    if P.cls == "trans" and (pvw & (vrd | vwr)): req = max(req, 1)
                    if P.cls == "dot" and (pvw & (vrd | vwr)):
                        same_acc = (I.cls == "dot" and I.op == P.op and len(I.ops) >= 1 and
                                    not (pvw & (regs_of(I.ops[1]) | regs_of(I.ops[2]))))
                        if not same_acc: req = max(req, 3)
                    if "op_sel" in P.mods and isv and (pvw & (vrd | vwr)) and not P.op.startswith("v_pk"): req = max(req, 1)
                if P.cls == "salu" and (("s", 124) in P.wr) and (I.lds_dma or "addtid" in I.op): req = max(req, 1)
                if P.cls == "vstore" and ("x4" in P.op or "x3" in P.op):
                    dat = regs_of(P.ops[0])
                    if dat & vwr: req = max(req, 2 if isv else 1)
                if req > d: need = max(need, req - d)
            while need > 0:
                k = min(need, 16)
                emit(mk(f"s_nop {k-1}")); need -= k; stats["nops"] += 1
            emit(I)
            if I.cls in ("vmem", "vstore"): vmq.append(I)
            elif I.cls == "ds": lgq.append(I)
            elif I.cls == "smem": smem_pending |= I.wr
        if verbose: print(stats)
        lines = []
        for I in out:
            if I.is_label: lines.append(I.text.strip())
            elif I.text.startswith("; wait_vm") or I.text.startswith("; reset"): continue
            else: lines.append("  " + I.text)
        return "\n".join(lines) + "\n"
```

```python
from asmlib import *
X1_OFF   = 0x000000
H1S_OFF  = 0x300000
MT_OFF   = 0x600000
WVOT_OFF = 0x620000
WS_SIZE  = 0x10000000
SRD3     = 0x00020000
LOG2E = 1.4426950408889634
SCALE = 192 ** -0.5
AUX = 147456

class RA:
    def __init__(s, start=0, limit=256): s.n = start; s.limit = limit
    def get(s, cnt=1, align=1):
        s.n = (s.n + align - 1) // align * align
        r = s.n; s.n += cnt
        assert s.n <= s.limit, f"out of regs {s.n}"
        return r

def srd(a, base, size):
    a(f"s_mov_b32 s{base+2}, {size}")
    a(f"s_mov_b32 s{base+3}, 0x{SRD3:08x}")

def ln_stats(a, xp, vsum, vsq, t0, t1, vones):
    a(f"v_mov_b32 v{vsum}, 0"); a(f"v_mov_b32 v{vsq}, 0"); a(f"v_mov_b32 v{t0}, 0"); a(f"v_mov_b32 v{t1}, 0")
    for i, r in enumerate(xp):
        s_, q_ = (vsum, vsq) if i % 2 == 0 else (t0, t1)
        a(f"v_dot2c_f32_bf16 v{s_}, v{r}, v{vones}")
        a(f"v_dot2c_f32_bf16 v{q_}, v{r}, v{r}")
    a(f"v_add_f32 v{vsum}, v{vsum}, v{t0}")
    a(f"v_add_f32 v{vsq}, v{vsq}, v{t1}")
    for m in ("quad_perm:[1,0,3,2]", "quad_perm:[2,3,0,1]", "row_half_mirror"):
        a(f"v_add_f32_dpp v{vsum}, v{vsum}, v{vsum} {m} row_mask:0xf bank_mask:0xf")
        a(f"v_add_f32_dpp v{vsq}, v{vsq}, v{vsq} {m} row_mask:0xf bank_mask:0xf")
    a(f"v_mul_f32 v{vsum}, {fbits(1.0/192)}, v{vsum}")
    a(f"v_mul_f32 v{t0}, v{vsum}, v{vsum}")
    a(f"v_mov_b32 v{t1}, {fbits(1.0/192)}")
    a(f"v_fma_f32 v{vsq}, v{vsq}, v{t1}, -v{t0}")
    a(f"v_max_f32 v{vsq}, 0, v{vsq}")
    a(f"v_add_f32 v{vsq}, {fbits(1e-5)}, v{vsq}")
    a(f"v_rsq_f32 v{vsq}, v{vsq}")
    a(f"v_mul_f32 v{vsum}, v{vsum}, v{vsq}")
    a(f"v_sub_f32 v{vsum}, 0, v{vsum}")

def ln_apply(a, xp, outp, vnb, vrs, tmp):
    for i, r in enumerate(xp):
        t = tmp + 2 * (i % 2)
        a(f"v_lshlrev_b32 v{t}, 16, v{r}")
        a(f"v_and_b32 v{t+1}, 0xffff0000, v{r}")
        a(f"v_pk_fma_f32 v[{t}:{t+1}], v[{t}:{t+1}], v[{vrs}:{vrs+1}], v[{vnb}:{vnb+1}] op_sel_hi:[1,0,0]")
        a(f"v_cvt_pk_bf16_f32 v{outp[i]}, v{t}, v{t+1}")

def kernel_a(name, opts={}):
    a = Asm()
    ST = opts.get("stamp") == "1"
    nst = [0]
    def stamp():
        if ST:
            a(f"s_memtime s[{48+2*nst[0]}:{49+2*nst[0]}]"); nst[0] += 1
    R = RA(1, 256)
    sX, sWQ, sWO, sWS, sOS, sWSP = 4, 8, 12, 16, 20, 24
    sW, sN384, sXD, sWb, sWob, sM, sT0, sT1, sT2, sJT, sIT, sFA, sFB, sFst, sF = range(28, 43)
    vL = R.get(); vXoff = R.get(); vH1 = R.get(); vXD = R.get(); vWq = R.get(); vWo = R.get()
    vA = [[R.get() for i in range(3)] for s in range(3)]
    vHL = R.get(); vB0 = R.get(); vB1 = R.get(); vD = [R.get() for i in range(3)]; vS = R.get(); vSw = R.get()
    vF = R.get(); vFs = R.get(); vStR = R.get(); vOnes = R.get(); vDum = R.get()
    st = R.get(4, 2)
    tmp = R.get(16, 4)
    xln = R.get(12, 4); xd = R.get(12, 4)
    hf = R.get(48, 4); acc = R.get(48, 4); accv = R.get(24, 4); wf = R.get(24, 4)
    hp = R.get(12, 4)
    HF = lambda ks, tg: hf + (ks * 2 + tg) * 4
    ACC = lambda i, tg: acc + (i * 2 + tg) * 4
    ACCV = lambda i, tg: accv + (i * 2 + tg) * 4
    FA = lambda ks: ks * 4
    FB = lambda ks: 24 + ks * 4

    a.label(name)
    a("s_cmp_ge_u32 s2, 256")
    a(f"s_cbranch_scc1 {name}_end")
    stamp()
    for i, b in enumerate((sX, sWQ, sWO, sWS, sOS)):
        a(f"s_load_dwordx2 s[{b}:{b+1}], s[0:1], {8*i}")
    a(f"s_load_dwordx2 s[{sWSP}:{sWSP+1}], s[0:1], 56")
    t = tmp
    a(f"v_and_b32 v{vL}, 63, v0")
    a(f"v_lshrrev_b32 v{t}, 6, v0")
    a(f"v_readfirstlane_b32 s{sW}, v{t}")
    srd(a, sX, 3145728); srd(a, sWQ, 221184); srd(a, sWO, 73728); srd(a, sWS, 221184); srd(a, sOS, 73728); srd(a, sWSP, WS_SIZE)
    g_, l16, r_, c4, t8, c8 = t, t + 1, t + 2, t + 3, t + 4, t + 5
    u0, u1, u2 = t + 6, t + 7, t + 8
    a(f"v_lshrrev_b32 v{g_}, 4, v{vL}")
    a(f"v_and_b32 v{l16}, 15, v{vL}")
    a(f"v_bfe_u32 v{r_}, v{vL}, 2, 2")
    a(f"v_and_b32 v{c4}, 3, v{vL}")
    a(f"v_lshrrev_b32 v{t8}, 3, v{vL}")
    a(f"v_and_b32 v{c8}, 7, v{vL}")
    a(f"v_mul_u32_u24 v{u0}, 393216, v{t8}")
    a(f"v_lshl_add_u32 v{vXoff}, v{c8}, 4, v{u0}")
    a(f"s_lshl_b32 s{sT0}, s2, 2")
    a(f"s_add_u32 s{sT0}, s{sT0}, s{sW}")
    a(f"s_mul_i32 s{sN384}, s{sT0}, 384")
    a(f"s_mul_i32 s{sXD}, s2, 1536")
    a(f"s_mul_i32 s{sT1}, s{sW}, 96")
    a(f"s_add_u32 s{sXD}, s{sXD}, s{sT1}")
    a(f"v_mul_u32_u24 v{u0}, 393216, v{c8}")
    a(f"v_and_b32 v{u1}, 1, v{t8}")
    a(f"v_mul_u32_u24 v{u1}, 384, v{u1}")
    a(f"v_lshl_add_u32 v{u0}, v{g_}, 3, v{u0}")
    a(f"v_add_u32 v{vXD}, v{u0}, v{u1}")
    a(f"s_and_b32 s{sT1}, s{sW}, 1")
    a(f"s_lshl_b32 s{sT1}, s{sT1}, 2")
    a(f"v_and_b32 v{u0}, 2, v{t8}")
    a(f"v_xor_b32 v{u0}, v{u0}, v{c8}")
    a(f"v_xor_b32 v{u0}, s{sT1}, v{u0}")
    a(f"v_lshlrev_b32 v{u0}, 4, v{u0}")
    a(f"v_mul_u32_u24 v{u1}, 1152, v{t8}")
    a(f"v_add_u32 v{vWq}, v{u0}, v{u1}")
    a(f"v_mul_u32_u24 v{u1}, 384, v{t8}")
    a(f"v_add_u32 v{vWo}, v{u0}, v{u1}")
    a(f"s_mul_i32 s{sWb}, s{sW}, 9216")
    a(f"s_mul_i32 s{sWob}, s{sW}, 3072")
    a(f"s_mul_i32 s{sM}, s{sW}, 3072")
    a(f"s_cmp_ge_u32 s2, 36")
    a(f"s_cselect_b32 s{sT1}, 36, 0")
    a(f"s_cselect_b32 s{sT2}, 768, 0")
    a(f"s_sub_u32 s{sF}, s2, s{sT1}")
    a(f"s_mul_i32 s{sJT}, s{sF}, 171")
    a(f"s_lshr_b32 s{sJT}, s{sJT}, 9")
    a(f"s_mul_i32 s{sT1}, s{sJT}, 3")
    a(f"s_sub_u32 s{sT1}, s{sF}, s{sT1}")
    a(f"s_lshl_b32 s{sIT}, s{sT1}, 2")
    a(f"s_add_u32 s{sIT}, s{sIT}, s{sW}")
    a(f"s_mul_i32 s{sFA}, s{sIT}, 18432")
    a(f"s_add_u32 s{sFA}, s{sFA}, s{sT2}")
    a(f"s_mul_i32 s{sFB}, s{sJT}, 18432")
    a(f"s_add_u32 s{sFB}, s{sFB}, 384")
    a(f"s_cmp_ge_u32 s2, 36")
    a(f"s_cselect_b32 s{sFst}, {WVOT_OFF-MT_OFF}, 0")
    a(f"s_add_u32 s{sFst}, s{sFst}, {MT_OFF}")
    a(f"s_mul_i32 s{sT1}, s{sJT}, 6144")
    a(f"s_add_u32 s{sFst}, s{sFst}, s{sT1}")
    a(f"s_lshl_b32 s{sT1}, s{sIT}, 9")
    a(f"s_add_u32 s{sFst}, s{sFst}, s{sT1}")
    a(f"v_mul_u32_u24 v{u0}, 1152, v{l16}")
    a(f"v_lshl_add_u32 v{vF}, v{g_}, 4, v{u0}")
    a("s_waitcnt lgkmcnt(0)")
    stamp()
    a(f"s_cmp_lg_u32 s{sW}, 3")
    a(f"s_cbranch_scc1 {name}_nopf")
    a.begin("pf")
    a(f"s_lshr_b32 s{sT1}, s2, 3")
    a(f"s_and_b32 s{sT1}, s{sT1}, 31")
    a(f"s_mul_i32 s{sT2}, s{sT1}, 6912")
    a(f"s_add_u32 s{sT2}, s{sT2}, 768")
    a(f"v_lshrrev_b32 v{u0}, 2, v{vL}")
    a(f"v_min_u32 v{u0}, 5, v{u0}")
    a(f"v_mul_u32_u24 v{u0}, 1152, v{u0}")
    a(f"v_min_u32 v{u1}, 2, v{c4}")
    a(f"v_lshl_add_u32 v{u0}, v{u1}, 7, v{u0}")
    a(f"buffer_load_dword v{vDum}, v{u0}, s[{sWQ}:{sWQ+3}], s{sT2} offen")
    a(f"s_mul_i32 s{sT2}, s{sT1}, 2304")
    a(f"v_min_u32 v{u1}, 17, v{vL}")
    a(f"v_lshlrev_b32 v{u1}, 7, v{u1}")
    a(f"buffer_load_dword v{vDum}, v{u1}, s[{sWO}:{sWO+3}], s{sT2} offen", noauto=True)
    a.end()
    a.label(f"{name}_nopf")
    a("s_cmp_ge_u32 s2, 72")
    a(f"s_cbranch_scc1 {name}_nofl")
    a.begin("fa")
    for ks in range(6):
        a(f"buffer_load_dwordx4 a[{FA(ks)}:{FA(ks)+3}], v{vF}, s[{sWS}:{sWS+3}], s{sFA} offen offset:{ks*64}")
    a.end()
    a("s_cmp_ge_u32 s2, 36")
    a(f"s_cbranch_scc1 {name}_nofl")
    a.begin("mt")
    for ks in range(6):
        a(f"buffer_load_dwordx4 a[{FB(ks)}:{FB(ks)+3}], v{vF}, s[{sWS}:{sWS+3}], s{sFB} offen offset:{ks*64}")
    a.end()
    a.label(f"{name}_nofl")
    for k in range(3):
        a(f"buffer_load_dwordx4 v[{xln+4*k}:{xln+4*k+3}], v{vXoff}, s[{sX}:{sX+3}], s{sN384} offen offset:{k*128}")
    for tg in range(2):
        for i in range(3):
            r = xd + (i * 2 + tg) * 2
            a(f"buffer_load_dwordx2 v[{r}:{r+1}], v{vXD}, s[{sX}:{sX+3}], s{sXD} offen offset:{tg*768+i*32}")
    def dma_unit(kind, ks, slot):
        last = None
        if kind in ("q", "k", "v"):
            mat = "qkv".index(kind)
            a(f"s_add_u32 s{sT0}, s{sWb}, {ks*36864 + mat*384}")
            voff, srd_ = vWq, sWQ
        else:
            a(f"s_add_u32 s{sT0}, s{sWob}, {ks*12288}")
            voff, srd_ = vWo, sWO
        for cb in range(3):
            a(f"s_add_u32 m0, s{sM}, {slot*12288 + cb*896}")
            last = a(f"buffer_load_dwordx4 v{voff}, s[{srd_}:{srd_+3}], s{sT0} offen offset:{cb*128} lds")
        return last
    H = {}
    for ks in range(6):
        H["q", ks] = dma_unit("q", ks, 2 * ks)
        H["k", ks] = dma_unit("k", ks, 2 * ks + 1)
    a(f"v_mul_u32_u24 v{u0}, 3072, v{g_}")
    a(f"v_lshl_add_u32 v{u0}, v{r_}, 7, v{u0}")
    a(f"v_bfe_u32 v{u1}, v{vL}, 2, 3")
    a(f"v_and_b32 v{u1}, 6, v{u1}")
    a(f"v_bfe_u32 v{u2}, v{vL}, 1, 1")
    a(f"v_or_b32 v{u1}, v{u1}, v{u2}")
    a(f"v_lshl_add_u32 v{u0}, v{u1}, 4, v{u0}")
    a(f"v_and_b32 v{u1}, 1, v{vL}")
    a(f"v_lshl_add_u32 v{u0}, v{u1}, 3, v{u0}")
    for i in range(3):
        a(f"s_mul_i32 s{sT0}, s{sW}, 3")
        a(f"s_add_u32 s{sT0}, s{sT0}, {i}")
        a(f"s_and_b32 s{sT1}, s{sT0}, 3")
        a(f"s_lshl_b32 s{sT1}, s{sT1}, 5")
        a(f"s_lshr_b32 s{sT2}, s{sT0}, 2")
        a(f"s_lshl_b32 s{sT2}, s{sT2}, 10")
        a(f"v_xor_b32 v{vA[0][i]}, s{sT1}, v{u0}")
        a(f"v_add_u32 v{vA[0][i]}, s{sT2}, v{vA[0][i]}")
        a(f"v_add_u32 v{vA[1][i]}, 49152, v{vA[0][i]}")
        a(f"v_add_u32 v{vA[2][i]}, 98304, v{vA[0][i]}")
    a(f"s_mul_i32 s{sT0}, s{sW}, 3072")
    a(f"s_add_u32 s{sT0}, s{sT0}, {AUX}")
    a(f"v_xor_b32 v{u0}, v{c8}, v{t8}")
    a(f"v_lshlrev_b32 v{u0}, 4, v{u0}")
    a(f"v_mul_u32_u24 v{u1}, 384, v{t8}")
    a(f"v_add3_u32 v{vHL}, v{u0}, v{u1}, s{sT0}")
    a(f"v_and_b32 v{u2}, 7, v{l16}")
    a(f"v_xor_b32 v{u0}, v{g_}, v{u2}")
    a(f"v_lshlrev_b32 v{u0}, 4, v{u0}")
    a(f"v_mul_u32_u24 v{u1}, 384, v{l16}")
    a(f"v_add_u32 v{u1}, {AUX}, v{u1}")
    a(f"v_add_u32 v{vB0}, v{u0}, v{u1}")
    a(f"v_xor_b32 v{vB1}, 64, v{vB0}")
    for i in range(3):
        a(f"s_mul_i32 s{sT0}, s{sW}, 6")
        a(f"s_add_u32 s{sT0}, s{sT0}, {2*i}")
        a(f"v_lshrrev_b32 v{u0}, 1, v{g_}")
        a(f"v_add_u32 v{u0}, s{sT0}, v{u0}")
        a(f"v_and_b32 v{vD[i]}, 7, v{u0}")
        a(f"v_xor_b32 v{vD[i]}, v{vD[i]}, v{u2}")
        a(f"v_lshl_add_u32 v{vD[i]}, v{vD[i]}, 4, v{u1}")
        a(f"v_lshrrev_b32 v{u0}, 3, v{u0}")
        a(f"v_lshl_add_u32 v{vD[i]}, v{u0}, 7, v{vD[i]}")
        a(f"v_and_b32 v{u0}, 1, v{g_}")
        a(f"v_lshl_add_u32 v{vD[i]}, v{u0}, 3, v{vD[i]}")
    a(f"v_lshlrev_b32 v{vS}, 4, v{vL}")
    a(f"v_add_u32 v{vS}, {AUX}, v{vS}")
    a(f"s_lshl_b32 s{sT0}, s{sW}, 11")
    a(f"v_add_u32 v{vSw}, s{sT0}, v{vS}")
    a(f"s_lshr_b32 s{sT0}, s{sW}, 1")
    a(f"s_lshl_b32 s{sT0}, s{sT0}, 2")
    a(f"s_and_b32 s{sT1}, s2, 3")
    a(f"s_or_b32 s{sT0}, s{sT0}, s{sT1}")
    a(f"v_xor_b32 v{u0}, s{sT0}, v{c8}")
    a(f"v_mul_u32_u24 v{u1}, 393216, v{t8}")
    a(f"v_lshl_add_u32 v{vH1}, v{u0}, 4, v{u1}")
    a(f"v_lshrrev_b32 v{u0}, 1, v{g_}")
    a(f"v_lshl_add_u32 v{u0}, v{u0}, 4, v{l16}")
    a(f"v_lshlrev_b32 v{u0}, 4, v{u0}")
    a(f"v_and_b32 v{u1}, 1, v{g_}")
    a(f"v_lshl_add_u32 v{vFs}, v{u1}, 3, v{u0}")
    vFs2 = R.get()
    a(f"v_lshl_add_u32 v{u0}, v{u1}, 4, v{l16}")
    a(f"v_lshlrev_b32 v{u0}, 4, v{u0}")
    a(f"v_lshrrev_b32 v{u1}, 1, v{g_}")
    a(f"v_lshl_add_u32 v{vFs2}, v{u1}, 3, v{u0}")
    a(f"v_lshl_add_u32 v{u0}, v{g_}, 3, v{r_}")
    a(f"v_lshlrev_b32 v{u0}, 5, v{u0}")
    a(f"v_lshl_add_u32 v{u0}, v{c4}, 3, v{u0}")
    a(f"v_add_u32 v{vStR}, {AUX+8192}, v{u0}")
    a(f"v_mov_b32 v{vOnes}, 0x3f803f80")
    a(f"v_lshrrev_b32 v{u0}, 3, v{l16}")
    a(f"v_lshrrev_b32 v{u1}, 1, v{g_}")
    a(f"v_cmp_eq_u32 s[44:45], v{u0}, v{u1}")
    vStg = R.get()
    a(f"v_lshrrev_b32 v{u0}, 1, v{vL}")
    a(f"v_mul_u32_u24 v{u0}, 384, v{u0}")
    a(f"v_and_b32 v{u1}, 1, v{vL}")
    a(f"v_lshl_add_u32 v{vStg}, v{u1}, 4, v{u0}")

    stamp()
    xs = [xln + i for i in range(12)]
    ln_stats(a, xs, st + 2, st, tmp, tmp + 1, vOnes)
    ln_apply(a, xs, [hp + i for i in range(12)], st + 2, st, tmp)
    for k in range(3):
        a(f"ds_write_b128 v{vHL}, v[{hp+4*k}:{hp+4*k+3}] offset:{k*128}")
    stamp()
    def fold_finish(scale, vFs=vFs):
        d = tmp + 8
        if scale is not None:
            for r in range(4): a(f"v_mul_f32 v{d+r}, {fbits(scale)}, v{d+r}")
        a(f"v_cvt_pk_bf16_f32 v{d+4}, v{d}, v{d+1}")
        a(f"v_cvt_pk_bf16_f32 v{d+5}, v{d+2}, v{d+3}")
        a(f"buffer_store_dwordx2 v[{d+4}:{d+5}], v{vFs}, s[{sWSP}:{sWSP+3}], s{sFst} offen")
    a("s_cmp_ge_u32 s2, 36")
    a(f"s_cbranch_scc1 {name}_nomt")
    a.begin("mt")
    d = tmp + 8
    for ks in range(6):
        c = "0" if ks == 0 else f"v[{d}:{d+3}]"
        a(f"v_mfma_f32_16x16x32_bf16 v[{d}:{d+3}], a[{FA(ks)}:{FA(ks)+3}], a[{FB(ks)}:{FB(ks)+3}], {c}")
    fold_finish(SCALE * LOG2E)
    a.end()
    a.label(f"{name}_nomt")

    def trread(dst, set_, i, slot, h):
        a(f"ds_read_b64_tr_b16 v[{dst+2*h}:{dst+2*h+1}], v{vA[set_][i]} offset:{(slot%4)*12288 + h*512}")
    def read_frags(dst):
        for ks in range(6):
            for tg in range(2):
                b = vB0 if ks % 2 == 0 else vB1
                r = dst + (ks * 2 + tg) * 4
                a(f"ds_read_b128 v[{r}:{r+3}], v{b} offset:{tg*6144 + (ks//2)*128}")
    refill = {1: [("v", 0, 0), ("v", 1, 1)], 2: [("v", 2, 2), ("v", 3, 3)], 3: [("v", 4, 4), ("v", 5, 5)],
              4: [("o", 0, 6), ("o", 1, 7)], 5: [("o", 2, 8), ("o", 3, 9)], 6: [("o", 4, 10), ("o", 5, 11)]}
    def do_refill(step):
        for kind, ks, slot in refill[step]:
            H[kind, ks] = dma_unit(kind, ks, slot)
    for ks in range(6):
        a.c(f"QK step {ks}")
        a.wait_vm(H["k", ks])
        if ks == 0: a("s_waitcnt lgkmcnt(0)")
        a("s_barrier")
        stamp()
        if ks == 0: read_frags(hf)
        for m in range(2):
            slot = 2 * ks + m
            for i in range(3):
                for h in range(2):
                    trread(wf + (m * 3 + i) * 4, slot // 4, i, slot, h)
        if ks >= 1: do_refill(ks)
        if ks == 1:
            a("s_sub_u32 s46, s2, 36")
            a("s_cmp_ge_u32 s46, 36")
            a(f"s_cbranch_scc1 {name}_nostg")
            a(f"s_cmp_ge_u32 s{sW}, 3")
            a(f"s_cbranch_scc1 {name}_nostg")
            a.begin("stg")
            a(f"s_mul_i32 s{sT0}, s{sW}, 24576")
            a(f"s_lshl_b32 s{sT1}, s{sJT}, 5")
            a(f"s_add_u32 s{sT0}, s{sT0}, s{sT1}")
            a(f"s_lshl_b32 s{sT1}, s{sW}, 11")
            a(f"s_add_u32 m0, s{sT1}, {AUX+8192}")
            a(f"s_add_u32 s{sT2}, s{sT0}, 12288")
            a(f"buffer_load_dwordx4 v{vStg}, s[{sOS}:{sOS+3}], s{sT0} offen lds")
            a(f"s_add_u32 m0, s{sT1}, {AUX+8192+1024}")
            a("s_nop 0")
            a(f"buffer_load_dwordx4 v{vStg}, s[{sOS}:{sOS+3}], s{sT2} offen lds")
            a.end()
            a.label(f"{name}_nostg")
        for m in range(2):
            for i in range(3):
                for tg in range(2):
                    A_ = wf + (m * 3 + i) * 4; D = ACC(m * 3 + i, tg)
                    c = "0" if ks == 0 else f"v[{D}:{D+3}]"
                    a(f"v_mfma_f32_16x16x32_bf16 v[{D}:{D+3}], v[{A_}:{A_+3}], v[{HF(ks,tg)}:{HF(ks,tg)+3}], {c}")
    a.c("S partial")
    pk = wf
    for m in range(2):
        for i in range(3):
            for tg in range(2):
                D = ACC(m * 3 + i, tg); p = pk + m * 12 + (i * 2 + tg) * 2
                a(f"v_cvt_pk_bf16_f32 v{p}, v{D}, v{D+1}")
                a(f"v_cvt_pk_bf16_f32 v{p+1}, v{D+2}, v{D+3}")
    sp = tmp
    for i in range(3):
        for tg in range(2):
            q = pk + (i * 2 + tg) * 2; k = pk + 12 + (i * 2 + tg) * 2; D = sp + tg * 4
            c = "0" if i == 0 else f"v[{D}:{D+3}]"
            a(f"v_mfma_f32_16x16x16_bf16 v[{D}:{D+3}], v[{k}:{k+1}], v[{q}:{q+1}], {c}")
    for i in range(3):
        for tg in range(2):
            r = xd + (i * 2 + tg) * 2; D = ACC(i, tg)
            a(f"v_lshlrev_b32 v{D}, 16, v{r}")
            a(f"v_and_b32 v{D+1}, 0xffff0000, v{r}")
            a(f"v_lshlrev_b32 v{D+2}, 16, v{r+1}")
            a(f"v_and_b32 v{D+3}, 0xffff0000, v{r+1}")
    for tg in range(2):
        a(f"ds_write_b128 v{vSw}, v[{sp+4*tg}:{sp+4*tg+3}] offset:{tg*1024}")
    def vgemm(kss):
        for ks in kss:
            for i in range(3):
                for h in range(2):
                    trread(wf + ((ks % 2) * 3 + i) * 4, ks // 4, i, ks, h)
        return
    def vmfma(kss):
        for ks in kss:
            for i in range(3):
                for tg in range(2):
                    B_ = wf + ((ks % 2) * 3 + i) * 4; D = ACCV(i, tg)
                    c = "0" if ks == 0 else f"v[{D}:{D+3}]"
                    a(f"v_mfma_f32_16x16x32_bf16 v[{D}:{D+3}], v[{HF(ks,tg)}:{HF(ks,tg)+3}], v[{B_}:{B_+3}], {c}")
    a.c("B6")
    a.wait_vm(H["v", 1])
    a("s_waitcnt lgkmcnt(0)")
    a("s_barrier")
    stamp()
    SP = lambda w_, tg: acc + 24 + 0 if False else None
    spr = hp
    sreg = []
    pool = [acc + 24 + 4 * j for j in range(6)] + [hp, hp + 4]
    for w_ in range(4):
        for tg in range(2):
            r = pool[w_ * 2 + tg]
            a(f"ds_read_b128 v[{r}:{r+3}], v{vS} offset:{(w_*2+tg)*1024}")
    vgemm([0, 1])
    do_refill(6)
    P = xln
    for tg in range(2):
        r0, r1, r2, r3 = [pool[w_ * 2 + tg] for w_ in range(4)]
        for j in range(2):
            a(f"v_pk_add_f32 v[{r0+2*j}:{r0+2*j+1}], v[{r0+2*j}:{r0+2*j+1}], v[{r1+2*j}:{r1+2*j+1}]")
            a(f"v_pk_add_f32 v[{r2+2*j}:{r2+2*j+1}], v[{r2+2*j}:{r2+2*j+1}], v[{r3+2*j}:{r3+2*j+1}]")
        for j in range(2):
            a(f"v_pk_add_f32 v[{r0+2*j}:{r0+2*j+1}], v[{r0+2*j}:{r0+2*j+1}], v[{r2+2*j}:{r2+2*j+1}]")
    vmfma([0, 1])
    cs = SCALE * LOG2E
    for tg in range(2):
        s0 = pool[tg]; m = xln + 4 + tg * 4; m2 = m + 1; l_ = m + 2; l2 = m + 3
        a(f"v_max_f32 v{m}, v{s0}, v{s0+1}")
        a(f"v_max3_f32 v{m}, v{s0+2}, v{s0+3}, v{m}")
        a(f"v_mov_b32 v{m2}, v{m}")
        a(f"v_permlane16_swap_b32 v{m}, v{m2}")
        a(f"v_max_f32 v{m}, v{m}, v{m2}")
        a(f"v_mul_f32 v{m}, {fbits(-cs)}, v{m}")
        a(f"v_mov_b32 v{m2}, {fbits(cs)}")
        for j in range(4):
            a(f"v_fma_f32 v{s0+j}, v{s0+j}, v{m2}, v{m}")
        for j in range(4):
            a(f"v_exp_f32 v{s0+j}, v{s0+j}")
        a(f"v_add_f32 v{l_}, v{s0}, v{s0+1}")
        a(f"v_add_f32 v{l2}, v{s0+2}, v{s0+3}")
        a(f"v_add_f32 v{l_}, v{l_}, v{l2}")
        a(f"v_mov_b32 v{l2}, v{l_}")
        a(f"v_permlane16_swap_b32 v{l_}, v{l2}")
        a(f"v_add_f32 v{l_}, v{l_}, v{l2}")
        a(f"v_rcp_f32 v{l_}, v{l_}")
        a(f"v_cndmask_b32 v{l_}, 0, v{l_}, s[44:45]")
        for j in range(4):
            a(f"v_mul_f32 v{s0+j}, v{s0+j}, v{l_}")
        a(f"v_cvt_pk_bf16_f32 v{P+2*tg}, v{s0}, v{s0+1}")
        a(f"v_cvt_pk_bf16_f32 v{P+2*tg+1}, v{s0+2}, v{s0+3}")
    a.c("B7")
    a.wait_vm(H["v", 3])
    a("s_barrier")
    stamp()
    vgemm([2, 3])
    a("s_sub_u32 s46, s2, 36")
    a("s_cmp_ge_u32 s46, 36")
    a(f"s_cbranch_scc1 {name}_nowv")
    a.begin("wv")
    fb = acc + 24
    for ks in range(6):
        for h in range(2):
            a(f"ds_read_b64_tr_b16 v[{fb+4*ks+2*h}:{fb+4*ks+2*h+1}], v{vStR} offset:{ks*1024+h*128}")
    d = tmp + 8
    for ks in range(6):
        c = "0" if ks == 0 else f"v[{d}:{d+3}]"
        a(f"v_mfma_f32_16x16x32_bf16 v[{d}:{d+3}], a[{FA(ks)}:{FA(ks)+3}], v[{fb+4*ks}:{fb+4*ks+3}], {c}")
    fold_finish(None, vFs2)
    a.end()
    a.label(f"{name}_nowv")
    vmfma([2, 3])
    a.c("B8")
    a.wait_vm(H["v", 5])
    a("s_barrier")
    stamp()
    vgemm([4, 5])
    vmfma([4, 5])
    vp = acc + 24
    for i in range(3):
        for tg in range(2):
            D = ACCV(i, tg); p = vp + (i * 2 + tg) * 2
            a(f"v_cvt_pk_bf16_f32 v{p}, v{D}, v{D+1}")
            a(f"v_cvt_pk_bf16_f32 v{p+1}, v{D+2}, v{D+3}")
    for i in range(3):
        for tg in range(2):
            p = vp + (i * 2 + tg) * 2; D = ACCV(i, tg)
            a(f"v_mfma_f32_16x16x16_bf16 v[{D}:{D+3}], v[{p}:{p+1}], v[{P+2*tg}:{P+2*tg+1}], 0")
    for i in range(3):
        for tg in range(2):
            D = ACCV(i, tg); p = vp + (i * 2 + tg) * 2
            a(f"v_cvt_pk_bf16_f32 v{p}, v{D}, v{D+1}")
            a(f"v_cvt_pk_bf16_f32 v{p+1}, v{D+2}, v{D+3}")
            a(f"ds_write_b64 v{vD[i]}, v[{p}:{p+1}] offset:{tg*6144}")
    def ogemm(kss):
        for ks in kss:
            slot = 6 + ks
            for i in range(3):
                for h in range(2):
                    trread(wf + ((ks % 2) * 3 + i) * 4, slot // 4, i, slot, h)
    def omfma(kss):
        for ks in kss:
            for i in range(3):
                for tg in range(2):
                    A_ = wf + ((ks % 2) * 3 + i) * 4; D = ACC(i, tg)
                    a(f"v_mfma_f32_16x16x32_bf16 v[{D}:{D+3}], v[{A_}:{A_+3}], v[{HF(ks,tg)}:{HF(ks,tg)+3}], v[{D}:{D+3}]")
    a.c("B9")
    a.wait_vm(H["o", 1])
    a("s_waitcnt lgkmcnt(0)")
    a("s_barrier")
    stamp()
    read_frags(hf)
    ogemm([0, 1]); omfma([0, 1])
    a.c("B10")
    a.wait_vm(H["o", 3])
    a("s_barrier")
    stamp()
    ogemm([2, 3]); omfma([2, 3])
    a.c("B11")
    a.wait_vm(H["o", 5])
    a("s_barrier")
    stamp()
    ogemm([4, 5]); omfma([4, 5])
    for i in range(3):
        for tg in range(2):
            D = ACC(i, tg); p = vp + (i * 2 + tg) * 2
            a(f"v_cvt_pk_bf16_f32 v{p}, v{D}, v{D+1}")
            a(f"v_cvt_pk_bf16_f32 v{p+1}, v{D+2}, v{D+3}")
            a(f"ds_write_b64 v{vD[i]}, v[{p}:{p+1}] offset:{tg*6144}")
    a.c("B12")
    a("s_waitcnt lgkmcnt(0)")
    a("s_barrier")
    stamp()
    for k in range(3):
        a(f"ds_read_b128 v[{xln+4*k}:{xln+4*k+3}], v{vHL} offset:{k*128}")
    a(f"s_add_u32 s{sT0}, s{sN384}, {X1_OFF}")
    a(f"s_lshr_b32 s{sT1}, s2, 3")
    a(f"s_mul_i32 s{sT1}, s{sT1}, 12288")
    a(f"s_and_b32 s{sT2}, s2, 7")
    a(f"s_lshl_b32 s{sT2}, s{sT2}, 2")
    a(f"s_add_u32 s{sT2}, s{sT2}, s{sW}")
    a(f"s_lshl_b32 s{sT2}, s{sT2}, 7")
    a(f"s_add_u32 s{sT1}, s{sT1}, s{sT2}")
    a(f"s_add_u32 s{sT1}, s{sT1}, {H1S_OFF}")
    for k in range(3):
        a(f"buffer_store_dwordx4 v[{xln+4*k}:{xln+4*k+3}], v{vXoff}, s[{sWSP}:{sWSP+3}], s{sT0} offen offset:{k*128}")
    ln_stats(a, xs, st + 2, st, tmp, tmp + 1, vOnes)
    ln_apply(a, xs, [hp + i for i in range(12)], st + 2, st, tmp)
    for k in range(3):
        a(f"buffer_store_dwordx4 v[{hp+4*k}:{hp+4*k+3}], v{vH1}, s[{sWSP}:{sWSP+3}], s{sT1} offen")
        if k < 2: a(f"s_add_u32 s{sT1}, s{sT1}, 4096")
    stamp()
    if ST:
        a("s_waitcnt vmcnt(0)")
        stamp()
        a("s_waitcnt lgkmcnt(0)")
        a(f"s_lshl_b32 s3, s2, 2")
        a(f"s_add_u32 s3, s3, s{sW}")
        a(f"s_lshl_b32 s3, s3, 7")
        a(f"s_add_u32 s3, s3, 0x800000")
        for i in range(nst[0]):
            a(f"v_mov_b32 v1, s{48+2*i}")
            a(f"v_mov_b32 v2, {4*i}")
            a(f"buffer_store_dword v1, v2, s[{sWSP}:{sWSP+3}], s3 offen")
        print("stamps", nst[0])
    a.label(f"{name}_end")
    a("s_endpgm")
    return a, R.n, 48
```

```python
from asmlib import *
from ka import X1_OFF, H1S_OFF, MT_OFF, WVOT_OFF, WS_SIZE, SRD3, srd
AUX = 147456
RING = 36864
NB = AUX + 12288
LB = NB + 512
SQ192 = 192 ** 0.5 * 1.01

def kernel_b(name, opts={}):
    a = Asm()
    ST = opts.get("stamp") == "1"
    nst = [0]
    def stamp():
        if ST:
            a(f"s_memtime s[{48+2*nst[0]}:{49+2*nst[0]}]"); nst[0] += 1
    sWS, sOUT = 4, 8
    sW, sT, sQB, sHB, sM, sT0, sT1, sT2, sRot, sGB, sOutB, sX1B, sCnt = range(12, 25)
    vL, vL16 = 1, 2
    vK = [3, 4, 5, 6]; vV = [[7, 8], [9, 10]]
    vHB = [11, 12]; vQW = 13; vQR = 14; vNW = 15; vNR = 16
    vRS = [17, 18]; vRW = 19; vAG = 20; vOB = 21; vOut = 22
    vl = [23, 24]; vri = [25, 26]
    tmp = 27
    O = 32
    S = [128, 144]; MREF = 160; P = [176, 184]
    T = 192
    XR = 224
    NV = 236
    AQ = 0; AK = 48; AV = 80; AW = 112; ASEL = 184; NA = 192
    NKB = 8; NVB = 8

    a.label(name)
    a("s_cmp_ge_u32 s2, 256")
    a(f"s_cbranch_scc1 {name}_end")
    stamp()
    a(f"s_load_dwordx2 s[{sOUT}:{sOUT+1}], s[0:1], 40")
    a(f"s_load_dwordx2 s[{sWS}:{sWS+1}], s[0:1], 56")
    t = T
    a(f"v_and_b32 v{vL}, 63, v0")
    a(f"v_lshrrev_b32 v{t}, 6, v0")
    a(f"v_readfirstlane_b32 s{sW}, v{t}")
    a(f"v_lshlrev_b32 v{vL16}, 4, v{vL}")
    srd(a, sWS, WS_SIZE); srd(a, sOUT, 3145728)
    a(f"s_and_b32 s{sT}, s2, 7")
    a(f"s_lshr_b32 s{sQB}, s2, 3")
    a(f"s_mul_i32 s{sHB}, s{sT}, 393216")
    a(f"s_mul_i32 s{sT0}, s{sQB}, 12288")
    a(f"s_add_u32 s{sOutB}, s{sHB}, s{sT0}")
    a(f"s_add_u32 s{sHB}, s{sHB}, {H1S_OFF}")
    a(f"s_mul_i32 s{sM}, s{sW}, {RING}")
    a(f"s_and_b32 s{sRot}, s{sQB}, 7")
    a(f"s_mul_i32 s{sGB}, s{sW}, 98304")
    a(f"s_add_u32 s{sGB}, s{sGB}, s{sHB}")
    a("s_waitcnt lgkmcnt(0)")
    stamp()
    a(f"s_mul_i32 s{sT0}, s{sW}, 3072")
    a(f"s_add_u32 m0, s{sT0}, {AUX}")
    a(f"s_add_u32 s{sT0}, s{sT0}, s{sOutB}")
    a(f"s_add_u32 s{sT0}, s{sT0}, {H1S_OFF}")
    for i in range(3):
        Hq = a(f"buffer_load_dwordx4 v{vL16}, s[{sWS}:{sWS+3}], s{sT0} offen offset:{i*1024} lds")
    def load_wfrags(off):
        a(f"s_mul_i32 s{sT0}, s{sW}, 18432")
        a(f"s_add_u32 s{sT0}, s{sT0}, {off}")
        res = []
        for idx in range(18):
            if idx and idx % 4 == 0: res.append(f"s_add_u32 s{sT0}, s{sT0}, 4096")
            res.append(f"buffer_load_dwordx4 a[{AW+4*idx}:{AW+4*idx+3}], v{vL16}, s[{sWS}:{sWS+3}], s{sT0} offen offset:{(idx%4)*1024}")
        return res
    for x in load_wfrags(MT_OFF): a(x)
    H = {}
    def tile_base(j, sreg):
        return [f"s_add_u32 s{sreg}, s{sRot}, {j}", f"s_and_b32 s{sreg}, s{sreg}, 7",
                f"s_mul_i32 s{sreg}, s{sreg}, 12288", f"s_add_u32 s{sreg}, s{sreg}, s{sGB}"]
    def dma_block(j, cb, sbase=None):
        blk = (3 * j + cb) % 9
        pre = [f"s_add_u32 m0, s{sM}, {blk*4096}", f"s_add_u32 s{sT1}, s{sT2}, {cb*4096}"]
        out = []
        for i in range(4):
            ins = f"buffer_load_dwordx4 v{vL16}, s[{sWS}:{sWS+3}], s{sT1} offen offset:{i*1024} lds"
            out.append((pre if i == 0 else []) + [ins])
        return out
    def issue_ring_prologue(record):
        for j in range(3):
            for x in tile_base(j, sT2): a(x)
            for cb in range(3):
                for grp in dma_block(j, cb):
                    for x in grp: last = a(x)
                if record: H[j, cb] = last
    issue_ring_prologue(True)
    stamp()
    q32, h, l16, g, r4, c4, f16, u0, u1, u2 = range(t, t + 10)
    a(f"v_and_b32 v{q32}, 31, v{vL}")
    a(f"v_lshrrev_b32 v{h}, 5, v{vL}")
    a(f"v_and_b32 v{l16}, 15, v{vL}")
    a(f"v_lshrrev_b32 v{g}, 4, v{vL}")
    a(f"v_bfe_u32 v{r4}, v{vL}, 2, 2")
    a(f"v_and_b32 v{c4}, 3, v{vL}")
    a(f"v_bfe_u32 v{u0}, v{vL}, 1, 1")
    a(f"v_lshl_or_b32 v{f16}, v{u0}, 2, v{r4}")
    a(f"v_lshlrev_b32 v{u1}, 7, v{l16}")
    for e in range(2):
        a(f"v_add_u32 v{u0}, {4*e}, v{g}")
        a(f"v_xor_b32 v{u0}, v{u0}, v{f16}")
        a(f"v_lshl_add_u32 v{u0}, v{u0}, 4, v{u1}")
        a(f"v_add_u32 v{vHB[e]}, {AUX}, v{u0}")
    a(f"v_lshlrev_b32 v{u1}, 7, v{q32}")
    a(f"v_add_u32 v{u1}, s{sM}, v{u1}")
    for m in range(4):
        a(f"v_add_u32 v{u0}, {2*m}, v{h}")
        a(f"v_xor_b32 v{u0}, v{u0}, v{f16}")
        a(f"v_lshl_add_u32 v{vK[m]}, v{u0}, 4, v{u1}")
    a(f"v_lshlrev_b32 v{u1}, 2, v{h}")
    a(f"v_add_u32 v{u1}, v{u1}, v{r4}")
    a(f"v_lshlrev_b32 v{u1}, 7, v{u1}")
    a(f"v_add_u32 v{u1}, s{sM}, v{u1}")
    a(f"v_and_b32 v{u2}, 1, v{c4}")
    a(f"v_lshl_add_u32 v{u1}, v{u2}, 3, v{u1}")
    a(f"v_and_b32 v{u2}, 1, v{g}")
    a(f"v_lshlrev_b32 v{u2}, 1, v{u2}")
    a(f"v_lshrrev_b32 v{u0}, 1, v{c4}")
    a(f"v_add_u32 v{u2}, v{u2}, v{u0}")
    a(f"v_lshrrev_b32 v{u0}, 1, v{r4}")
    a(f"v_lshl_or_b32 v{u0}, v{u0}, 2, v{h}")
    a(f"v_xor_b32 v{u2}, v{u2}, v{u0}")
    for e in range(2):
        for jj in range(2):
            a(f"v_xor_b32 v{u0}, {4*e ^ (2*jj)}, v{u2}")
            a(f"v_lshl_add_u32 v{u0}, v{u0}, 4, v{u1}")
            a(f"v_add_u32 v{vV[e][jj]}, {jj*1024}, v{u0}")
    a(f"s_mul_i32 s{sT0}, s{sW}, 3072")
    a(f"s_add_u32 s{sT1}, s{sT0}, {AUX}")
    a(f"v_lshl_add_u32 v{u0}, v{h}, 5, v{l16}")
    a(f"v_lshlrev_b32 v{u0}, 4, v{u0}")
    a(f"v_and_b32 v{u1}, 1, v{g}")
    a(f"v_lshl_add_u32 v{u0}, v{u1}, 3, v{u0}")
    a(f"v_add_u32 v{vQW}, s{sT1}, v{u0}")
    a(f"v_add_u32 v{vQR}, {AUX}, v{vL16}")
    a(f"v_add_u32 v{vAG}, s{sT1}, v{vL16}")
    a(f"v_add_u32 v{vRS[0]}, s{sT0}, v{vL16}")
    a(f"v_add_u32 v{vRS[1]}, {2*RING}, v{vRS[0]}")
    a(f"v_add_u32 v{vRW}, s{sM}, v{vL16}")
    a(f"s_lshl_b32 s{sT1}, s{sW}, 2")
    a(f"s_add_u32 s{sT1}, s{sT1}, {NB}")
    a(f"v_lshlrev_b32 v{u0}, 4, v{l16}")
    a(f"v_add_u32 v{vNW}, s{sT1}, v{u0}")
    a(f"v_lshlrev_b32 v{u0}, 4, v{q32}")
    a(f"v_add_u32 v{vNR}, {NB}, v{u0}")
    a(f"v_lshl_add_u32 v{u0}, v{u1}, 5, v{l16}")
    a(f"v_lshlrev_b32 v{u0}, 4, v{u0}")
    a(f"v_lshl_add_u32 v{u0}, v{h}, 10, v{u0}")
    a(f"v_add_u32 v{vOB}, {AUX}, v{u0}")
    a(f"v_mul_u32_u24 v{u0}, 384, v{l16}")
    a(f"v_lshl_add_u32 v{vOut}, v{g}, 3, v{u0}")
    a(f"v_and_b32 v{u0}, 1, v{vL}")
    a(f"v_lshlrev_b32 v{u0}, 4, v{u0}")
    a(f"v_mov_b32 v{u1}, 0x3f80")
    a(f"v_lshlrev_b32 v{u0}, v{u0}, v{u1}")
    a(f"v_bfe_u32 v{u1}, v{vL}, 2, 1")
    a(f"v_cmp_eq_u32 vcc, v{u1}, v{h}")
    a(f"v_cndmask_b32 v{u0}, 0, v{u0}, vcc")
    a(f"v_bfe_u32 v{u1}, v{vL}, 3, 1")
    a(f"v_bfe_u32 v{u2}, v{vL}, 1, 1")
    a(f"v_lshl_add_u32 v{u1}, v{u1}, 1, v{u2}")
    a(f"v_bfe_u32 v{u2}, v{vL}, 4, 1")
    a(f"v_lshl_add_u32 v{u1}, v{u2}, 2, v{u1}")
    for i in range(8):
        a(f"v_cmp_eq_u32 vcc, {i}, v{u1}")
        a(f"v_cndmask_b32 v{u2}, 0, v{u0}, vcc")
        a(f"v_accvgpr_write_b32 a{ASEL+i}, v{u2}")
    HF = lambda ks, tg: O + (ks * 2 + tg) * 4
    QD = lambda i, tg: S[0] + (i * 2 + tg) * 4
    a.wait_vm(Hq)
    a("s_barrier")
    stamp()
    for ks in range(6):
        for tg in range(2):
            r = HF(ks, tg)
            a(f"ds_read_b128 v[{r}:{r+3}], v{vHB[ks%2]} offset:{(ks//2)*4096 + tg*2048}")
    for i in range(3):
        for ks in range(6):
            for tg in range(2):
                D = QD(i, tg); c = "0" if ks == 0 else f"v[{D}:{D+3}]"
                w_ = AW + 4 * (i * 6 + ks)
                a(f"v_mfma_f32_16x16x32_bf16 v[{D}:{D+3}], a[{w_}:{w_+3}], v[{HF(ks,tg)}:{HF(ks,tg)+3}], {c}")
        if i == 0:
            a("s_barrier")
    stamp()
    for i in range(3):
        for tg in range(2):
            D = QD(i, tg); p = T + 16 + (i * 2 + tg) * 2
            a(f"v_cvt_pk_bf16_f32 v{p}, v{D}, v{D+1}")
            a(f"v_cvt_pk_bf16_f32 v{p+1}, v{D+2}, v{D+3}")
            a(f"ds_write_b64 v{vQW}, v[{p}:{p+1}] offset:{i*1024 + tg*256}")
    for tg in range(2):
        n = tmp + tg
        first = True
        for i in range(3):
            for r in range(4):
                D = QD(i, tg) + r
                if first: a(f"v_mul_f32 v{n}, v{D}, v{D}"); first = False
                else: a(f"v_fmac_f32 v{n}, v{D}, v{D}")
    for tg in range(2):
        n = tmp + tg; m = tmp + 2 + tg
        a(f"v_mov_b32 v{m}, v{n}")
        a(f"v_permlane16_swap_b32 v{n}, v{m}")
        a(f"v_add_f32 v{n}, v{n}, v{m}")
        a(f"v_mov_b32 v{m}, v{n}")
        a(f"v_permlane32_swap_b32 v{n}, v{m}")
        a(f"v_add_f32 v{n}, v{n}, v{m}")
        a(f"ds_write_b32 v{vNW}, v{n} offset:{NB - NB + tg*256}")
    a("s_waitcnt lgkmcnt(0)")
    a("s_barrier")
    stamp()
    a(f"ds_read_b128 v[{T}:{T+3}], v{vNR}")
    for ks in range(12):
        a(f"ds_read_b128 a[{AQ+4*ks}:{AQ+4*ks+3}], v{vQR} offset:{ks*1024}")
    a(f"v_add_f32 v{T}, v{T}, v{T+1}")
    a(f"v_add_f32 v{T+2}, v{T+2}, v{T+3}")
    a(f"v_add_f32 v{T}, v{T}, v{T+2}")
    a(f"v_sqrt_f32 v{T}, v{T}")
    a(f"v_mul_f32 v{T}, {fbits(SQ192)}, v{T}")
    a(f"v_mov_b32 v{T+1}, {fbits(80.0)}")
    a(f"v_cmp_nle_f32 vcc, v{T}, v{T+1}")
    a(f"v_sub_f32 v{MREF}, {fbits(64.0)}, v{T}")
    a(f"s_cbranch_vccnz {name}_fb")
    a.label(f"{name}_go")
    for i in range(1, 16): a(f"v_mov_b32 v{MREF+i}, v{MREF}")
    a(f"v_mov_b32 v{vl[0]}, 0"); a(f"v_mov_b32 v{vl[1]}, 0")
    stamp()

    kcnt = [0]; vcnt = [0]
    kreg = {}; vreg = {}
    def kread(j, ks):
        r = AK + 4 * (kcnt[0] % NKB); kcnt[0] += 1; kreg[j, ks] = r
        blk = (3 * j + ks // 4) % 9
        pre = [("waitvm", H[j, ks // 4])] if ks % 4 == 0 else []
        return pre + [f"ds_read_b128 a[{r}:{r+3}], v{vK[ks%4]} offset:{blk*4096}"]
    def vread(j, s, ct):
        r = AV + 4 * (vcnt[0] % NVB); vcnt[0] += 1; vreg[j, s, ct] = r
        blk = (3 * j + ct // 2) % 9
        return [f"ds_read_b64_tr_b16 a[{r+2*jj}:{r+2*jj+1}], v{vV[ct%2][jj]} offset:{blk*4096 + s*2048}" for jj in range(2)]
    def smfma(j, ks):
        D = S[j % 2]; r = kreg[j, ks]
        c = f"v[{MREF}:{MREF+15}]" if ks == 0 else f"v[{D}:{D+15}]"
        return f"v_mfma_f32_32x32x16_bf16 v[{D}:{D+15}], a[{r}:{r+3}], a[{AQ+4*ks}:{AQ+4*ks+3}], {c}"
    def pvmfma(j, s, ct):
        D = O + 16 * ct; r = vreg[j, s, ct]; p = P[j % 2] + 4 * s
        c = "0" if (j == 0 and s == 0) else f"v[{D}:{D+15}]"
        return f"v_mfma_f32_32x32x16_bf16 v[{D}:{D+15}], a[{r}:{r+3}], v[{p}:{p+3}], {c}"
    def softmax_items(j):
        D = S[j % 2]; p = P[j % 2]; items = []
        for i in range(16):
            it = [f"v_exp_f32 v{D+i}, v{D+i}"]
            if i >= 1: it.append(f"v_add_f32 v{vl[(i-1)%2]}, v{vl[(i-1)%2]}, v{D+i-1}")
            if i >= 2 and i % 2 == 0: it.append(f"v_cvt_pk_bf16_f32 v{p+(i-2)//2}, v{D+i-2}, v{D+i-1}")
            items.append(it)
        tail = [f"v_add_f32 v{vl[1]}, v{vl[1]}, v{D+15}", f"v_cvt_pk_bf16_f32 v{p+7}, v{D+14}, v{D+15}"]
        return items, tail
    def emit(lst):
        for x in lst:
            if isinstance(x, tuple): a.wait_vm(x[1])
            else: a(x)
    KL = 4
    VL = 4
    seq = [("S", 0, ks) for ks in range(12)]
    for j in range(8):
        if j < 7: seq += [("S", j + 1, ks) for ks in range(12)]
        seq += [("PV", j, s, ct) for s in range(2) for ct in range(6)]
    NG = len(seq)
    fill = [[] for _ in range(NG + 64)]
    pos = {m: i for i, m in enumerate(seq)}
    pre_reads = []
    order = []
    for i, m in enumerate(seq):
        lead = KL if m[0] == "S" else VL
        order.append((i - lead - 1, i, m))
    reads_at = {}
    for at, i, m in order:
        reads_at.setdefault(max(at, -1), []).append(m)
    sm_at = {}
    def place_softmax(j, first_gap, step=1.0):
        items, tail = softmax_items(j)
        gi = first_gap
        for i, it in enumerate(items):
            gidx = int(first_gap + i * step)
            sm_at.setdefault(gidx, []).extend(it)
        sm_at.setdefault(int(first_gap + 16 * step), []).extend(tail)
    for j in range(7):
        g0 = pos["S", j + 1, 0]
        place_softmax(j, g0 + (2 if j == 0 else 0), step=(14.0/16 if j in (0, 6) else 1.0))
    place_softmax(7, pos["PV", 6, 0, 0] + 3, step=14.0/16)
    dma_at = {}
    for j in range(5):
        g0 = pos["PV", j, 1, 1]
        gi = g0 + 1
        for cb in range(3):
            assert gi > pos["PV", j, 1, 2 * cb + 1] or True
            gi = max(gi, pos["PV", j, 1, 2 * cb + 1] + 1)
            for k, grp in enumerate(dma_block(j + 3, cb)):
                pre = tile_base(j + 3, sT2) if (cb == 0 and k == 0) else []
                dma_at.setdefault(gi, []).append((pre + grp, (j + 3, cb) if k == 3 else None))
                gi += 1
    late = []
    wl = load_wfrags
    late_start = pos["PV", 5, 0, 0]
    def do_reads(ms):
        for m in ms:
            if m[0] == "S": emit(kread(m[1], m[2]))
            else: emit(vread(m[1], m[2], m[3]))
    do_reads(reads_at.get(-1, []))
    late_list = None
    epi_units = []
    for i, m in enumerate(seq):
        a(smfma(m[1], m[2]) if m[0] == "S" else pvmfma(m[1], m[2], m[3]))
        if m[0] == "S" and m[2] == 0 or m[0] == "PV" and m[2] == 0 and m[3] == 0: stamp()
        do_reads(reads_at.get(i, []))
        emit(sm_at.get(i, []))
        for grp, key in dma_at.get(i, []):
            for x in grp: last = a(x)
            if key: H[key] = last
        if i == late_start:
            txt = []
            txt.append([f"s_mul_i32 s{sT0}, s{sW}, 18432", f"s_add_u32 s{sT0}, s{sT0}, {WVOT_OFF}"])
            for idx in range(18):
                grp = []
                if idx and idx % 4 == 0: grp.append(f"s_add_u32 s{sT0}, s{sT0}, 4096")
                grp.append(f"buffer_load_dwordx4 a[{AW+4*idx}:{AW+4*idx+3}], v{vL16}, s[{sWS}:{sWS+3}], s{sT0} offen offset:{(idx%4)*1024}")
                txt.append(grp)
            txt.append([f"s_mul_i32 s{sT1}, s{sW}, 96", f"s_add_u32 s{sOutB}, s{sOutB}, s{sT1}", f"s_add_u32 s{sX1B}, s{sOutB}, {X1_OFF}",
                        f"s_add_u32 s{sT1}, s{sX1B}, 6144"])
            for tg in range(2):
                for ii in range(3):
                    r = XR + (ii * 2 + tg) * 2
                    txt.append([f"buffer_load_dwordx2 v[{r}:{r+1}], v{vOut}, s[{sWS}:{sWS+3}], s{sX1B if tg == 0 else sT1} offen offset:{ii*32}"])
            late_list = txt
        if late_list:
            emit(late_list.pop(0))
        if m[0] == "PV" and m[1] == 7 and m[2] == 1 and m[3] >= 2:
            epi_units.append(m[3] - 2)
            ct = m[3] - 2
            for s in range(2):
                u = 2 * ct + s; tt = T + (u % 4) * 4
                for k in range(4):
                    a(f"v_cvt_pk_bf16_f32 v{tt+k}, v{O+16*ct+8*s+2*k}, v{O+16*ct+8*s+2*k+1}")
                a(f"ds_write_b128 v{vRW}, v[{tt}:{tt+3}] offset:{u*1024}")
    while late_list: emit(late_list.pop(0))
    for gi in range(NG, NG + 64):
        emit(sm_at.get(gi, []))
    stamp()
    a(f"v_add_f32 v{vl[0]}, v{vl[0]}, v{vl[1]}")
    a(f"v_mov_b32 v{vl[1]}, v{vl[0]}")
    a(f"v_permlane32_swap_b32 v{vl[0]}, v{vl[1]}")
    a(f"v_add_f32 v{vl[0]}, v{vl[0]}, v{vl[1]}")
    a(f"s_lshl_b32 s{sT0}, s{sW}, 2")
    a(f"v_add_u32 v{tmp}, s{sT0}, v{vNR}")
    a(f"ds_write_b32 v{tmp}, v{vl[0]} offset:512")
    for ct in range(6):
        if ct in epi_units: continue
        for s in range(2):
            u = 2 * ct + s; tt = T + (u % 4) * 4
            for k in range(4):
                a(f"v_cvt_pk_bf16_f32 v{tt+k}, v{O+16*ct+8*s+2*k}, v{O+16*ct+8*s+2*k+1}")
            a(f"ds_write_b128 v{vRW}, v[{tt}:{tt+3}] offset:{u*1024}")
    a("s_waitcnt lgkmcnt(0)")
    a("s_barrier")
    stamp()
    RF = lambda i, src: AK + (i * 4 + src) * 4
    for i in range(3):
        for src in range(4):
            a(f"ds_read_b128 a[{RF(i,src)}:{RF(i,src)+3}], v{vRS[src//2]} offset:{(src%2)*RING + i*1024}")
    a(f"v_and_b32 v{tmp}, 15, v{vL}")
    a(f"v_lshlrev_b32 v{tmp}, 4, v{tmp}")
    a(f"v_add_u32 v{tmp}, {LB}, v{tmp}")
    a(f"ds_read_b128 v[{T+16}:{T+19}], v{tmp}")
    a(f"ds_read_b128 v[{T+20}:{T+23}], v{tmp} offset:256")
    for i in range(3):
        D = S[0] if i < 2 else S[1]
        sel = ASEL + (4 if i == 1 else 0)
        for src in range(4):
            c = "0" if (src == 0 and i != 1) else f"v[{D}:{D+15}]"
            a(f"v_mfma_f32_32x32x16_bf16 v[{D}:{D+15}], a[{sel}:{sel+3}], a[{RF(i,src)}:{RF(i,src)+3}], {c}")
    for tg in range(2):
        r = T + 16 + 4 * tg
        a(f"v_add_f32 v{r}, v{r}, v{r+1}")
        a(f"v_add_f32 v{r+2}, v{r+2}, v{r+3}")
        a(f"v_add_f32 v{r}, v{r}, v{r+2}")
        a(f"v_rcp_f32 v{vri[tg]}, v{r}")
    for i in range(3):
        src = (S[0] + 8 * i) if i < 2 else S[1]
        tt = T + 4 * i
        for k in range(4):
            a(f"v_cvt_pk_bf16_f32 v{tt+k}, v{src+2*k}, v{src+2*k+1}")
        a(f"ds_write_b128 v{vAG}, v[{tt}:{tt+3}] offset:{i*1024}")
    a("s_waitcnt lgkmcnt(0)")
    a("s_barrier")
    stamp()
    OB = lambda ct, tg: AQ + (ct * 2 + tg) * 4
    for ct in range(6):
        for tg in range(2):
            a(f"ds_read_b128 a[{OB(ct,tg)}:{OB(ct,tg)+3}], v{vOB} offset:{ct*2048 + tg*256}")
    OD = lambda i, tg: O + (i * 2 + tg) * 4
    for ct in range(6):
        for i in range(3):
            for tg in range(2):
                D = OD(i, tg); c = "0" if ct == 0 else f"v[{D}:{D+3}]"
                w_ = AW + 4 * (i * 6 + ct)
                a(f"v_mfma_f32_16x16x32_bf16 v[{D}:{D+3}], a[{w_}:{w_+3}], a[{OB(ct,tg)}:{OB(ct,tg)+3}], {c}")
    stamp()
    a(f"s_add_u32 s{sT1}, s{sOutB}, 6144")
    for tg in range(2):
        for i in range(3):
            D = OD(i, tg); x = XR + (i * 2 + tg) * 2; tt = T + (i * 2 + tg) * 4
            a(f"v_lshlrev_b32 v{tt}, 16, v{x}")
            a(f"v_and_b32 v{tt+1}, 0xffff0000, v{x}")
            a(f"v_lshlrev_b32 v{tt+2}, 16, v{x+1}")
            a(f"v_and_b32 v{tt+3}, 0xffff0000, v{x+1}")
            for r in range(4):
                a(f"v_fma_f32 v{tt+r}, v{D+r}, v{vri[tg]}, v{tt+r}")
            a(f"v_cvt_pk_bf16_f32 v{tt}, v{tt}, v{tt+1}")
            a(f"v_cvt_pk_bf16_f32 v{tt+1}, v{tt+2}, v{tt+3}")
            a(f"buffer_store_dwordx2 v[{tt}:{tt+1}], v{vOut}, s[{sOUT}:{sOUT+3}], s{sOutB if tg == 0 else sT1} offen offset:{i*32}")
    stamp()
    if ST:
        a("s_waitcnt vmcnt(0)")
        stamp()
        a("s_waitcnt lgkmcnt(0)")
        a(f"s_lshl_b32 s3, s2, 2")
        a(f"s_add_u32 s3, s3, s{sW}")
        a(f"s_lshl_b32 s3, s3, 8")
        a(f"s_add_u32 s3, s3, 0x900000")
        for i in range(nst[0]):
            a(f"v_mov_b32 v1, s{48+2*i}")
            a(f"v_mov_b32 v2, {4*i}")
            a(f"buffer_store_dword v1, v2, s[{sWS}:{sWS+3}], s3 offen")
        print("B stamps", nst[0])
    a("s_endpgm")
    a.label(f"{name}_fb")
    a.reset()
    a("s_waitcnt vmcnt(0) lgkmcnt(0)")
    a(f"v_mov_b32 v{tmp}, {fbits(-3.0e38)}")
    a(f"s_mov_b32 s{sCnt}, 0")
    a.label(f"{name}_fbl")
    a.reset()
    a(f"s_mul_i32 s{sT2}, s{sCnt}, 12288")
    a(f"s_add_u32 s{sT2}, s{sT2}, s{sGB}")
    for cb in range(3):
        for grp in dma_block(0, cb):
            for x in grp: a(x)
    a("s_waitcnt vmcnt(0)")
    D = S[0]
    for ks in range(12):
        r = AK + 4 * (ks % 8)
        a(f"ds_read_b128 a[{r}:{r+3}], v{vK[ks%4]} offset:{(ks//4)*4096}")
        c = "0" if ks == 0 else f"v[{D}:{D+15}]"
        a(f"v_mfma_f32_32x32x16_bf16 v[{D}:{D+15}], a[{r}:{r+3}], a[{AQ+4*ks}:{AQ+4*ks+3}], {c}")
    for i in range(0, 16, 2):
        a(f"v_max3_f32 v{tmp}, v{D+i}, v{D+i+1}, v{tmp}")
    a(f"s_add_u32 s{sCnt}, s{sCnt}, 1")
    a(f"s_cmp_lt_u32 s{sCnt}, 8")
    a(f"s_cbranch_scc1 {name}_fbl")
    a.reset()
    a(f"v_mov_b32 v{tmp+1}, v{tmp}")
    a("s_nop 1")
    a(f"v_permlane32_swap_b32 v{tmp}, v{tmp+1}")
    a(f"v_max_f32 v{tmp}, v{tmp}, v{tmp+1}")
    a(f"s_lshl_b32 s{sT0}, s{sW}, 2")
    a(f"v_add_u32 v{tmp+1}, s{sT0}, v{vNR}")
    a(f"ds_write_b32 v{tmp+1}, v{tmp} offset:1024")
    a("s_waitcnt lgkmcnt(0)")
    a("s_barrier")
    a(f"ds_read_b128 v[{T}:{T+3}], v{vNR} offset:1024")
    a(f"v_max_f32 v{T}, v{T}, v{T+1}")
    a(f"v_max3_f32 v{T}, v{T+2}, v{T+3}, v{T}")
    a(f"v_sub_f32 v{MREF}, 0, v{T}")
    issue_ring_prologue(False)
    a("s_nop 4")
    a(f"s_branch {name}_go")
    a.label(f"{name}_end")
    a("s_endpgm")
    return a, NV, NA
```

```python
import sys, os
sys.path.insert(0, os.path.dirname(os.path.abspath(__file__)))
from asmlib import *
import ka
try:
    import kb
except ImportError:
    kb = None

HDR = """; Video TimeSformer block (temporal attn + spatial attn), gfx950. Generated by gen/gen.py
{launch}
.amdgcn_target "amdgcn-amd-amdhsa--gfx950"
.text
"""
def kdesc(name, nv, na, nsgpr=102):
    acc = (nv + 3) // 4 * 4
    if na: acc = max(acc, 4)
    tot = acc + na
    return f""".amdhsa_kernel {name}
  .amdhsa_next_free_vgpr {tot}
  .amdhsa_next_free_sgpr {nsgpr}
  .amdhsa_accum_offset {acc}
  .amdhsa_group_segment_fixed_size 0
  .amdhsa_kernarg_size 64
  .amdhsa_user_sgpr_count 2
  .amdhsa_user_sgpr_kernarg_segment_ptr 1
  .amdhsa_system_sgpr_workgroup_id_x 1
.end_amdhsa_kernel
"""
def build(out, kernels):
    launch = "\n".join(f"; @launch kernel={k[0]} grid=({k[4]},1,1) block=({k[5]},1,1) lds={k[6]}" for k in kernels)
    txt = HDR.format(launch=launch)
    seen = set()
    for name, a, nv, na, grid, block, lds in kernels:
        if name in seen: continue
        seen.add(name)
        txt += f".globl {name}\n.p2align 8\n.type {name},@function\n"
        txt += a.finalize()
    txt += '.section .rodata,"a"\n'
    seen = set()
    for name, a, nv, na, grid, block, lds in kernels:
        if name in seen: continue
        seen.add(name)
        txt += ".p2align 6\n" + kdesc(name, nv, na)
    open(out, "w").write(txt)
    return txt

if __name__ == "__main__":
    out = sys.argv[1] if len(sys.argv) > 1 else "standalone__video_timesformer__vision.s"
    opts = dict(x.split("=") for x in sys.argv[2:])
    MAIN = "standalone__video_timesformer__vision_kernel"
    ks = []
    a, nv, na = ka.kernel_a(MAIN, opts)
    ks.append((MAIN, a, nv, na, 256, 256, 163840))
    if kb is not None and opts.get("nob") != "1":
        b, nv, na = kb.kernel_b("ts_b_kernel", opts)
        ks.append(("ts_b_kernel", b, nv, na, 256, 256, 163840))
    build(out, ks)
    print("wrote", out)
```

```python
import re, struct

def fbits(x):
    return "0x%08x" % struct.unpack("<I", struct.pack("<f", x))[0]

def vr(r, n=1, p="v"):
    return f"{p}{r}" if n == 1 else f"{p}[{r}:{r+n-1}]"
def ar(r, n=1): return vr(r, n, "a")
def sr(r, n=1): return vr(r, n, "s")

_reg_re = re.compile(r"^(-|\|)?([vas])(\d+)\|?$")
_rng_re = re.compile(r"^(-|\|)?([vas])\[(\d+):(\d+)\]\|?$")

def regs_of(tok):
    tok = tok.strip()
    m = _reg_re.match(tok)
    if m: return {(m.group(2), int(m.group(3)))}
    m = _rng_re.match(tok)
    if m: return {(m.group(2), i) for i in range(int(m.group(3)), int(m.group(4)) + 1)}
    if tok == "vcc": return {("s", 106), ("s", 107)}
    if tok == "vcc_lo": return {("s", 106)}
    if tok == "vcc_hi": return {("s", 107)}
    if tok == "exec": return {("s", 126), ("s", 127)}
    if tok == "m0": return {("s", 124)}
    if tok == "scc": return set()
    return set()

TRANS = ("v_exp_f32", "v_log_f32", "v_rcp_f32", "v_rsq_f32", "v_sqrt_f32", "v_sin_f32", "v_cos_f32", "v_rcp_iflag_f32")
NODST_S = ("s_cmp", "s_waitcnt", "s_barrier", "s_nop", "s_cbranch", "s_branch", "s_endpgm", "s_setprio", "s_bitcmp", "s_sleep")

class Ins:
    __slots__ = ("text", "op", "ops", "mods", "rd", "wr", "cls", "tag", "passes", "srcC", "srcAB", "dpp", "is_label",
                 "need_vm", "lds_dma", "idx", "ws", "noauto", "comment")
    def __init__(s):
        s.tag = None; s.passes = 0; s.srcC = set(); s.srcAB = set(); s.dpp = False; s.is_label = False
        s.need_vm = None; s.lds_dma = False; s.rd = set(); s.wr = set(); s.cls = "other"; s.ws = 1; s.noauto = False
        s.comment = False; s.op = ""; s.ops = []; s.mods = ""

def parse(text):
    I = Ins(); I.text = text
    t = text.split(";")[0].strip()
    if not t:
        I.comment = True; I.ws = 0; return I
    if t.endswith(":"):
        I.is_label = True; I.ws = 0; I.cls = "label"; return I
    sp = t.split(None, 1)
    op = sp[0]; I.op = op
    rest = sp[1] if len(sp) > 1 else ""
    parts = [p.strip() for p in re.split(r",(?![^\[]*\])", rest)] if rest else []
    mods = ""
    if parts:
        lp = parts[-1].split(None, 1)
        parts[-1] = lp[0]
        if len(lp) > 1: mods = lp[1]
    I.ops = parts; I.mods = mods
    R = lambda k: regs_of(parts[k]) if k < len(parts) else set()
    allfrom = lambda k: set().union(*[regs_of(p) for p in parts[k:]]) if len(parts) > k else set()
    if op.startswith("v_mfma"):
        I.cls = "mfma"
        I.passes = 8 if "32x32" in op else 4
        I.wr = R(0); I.srcAB = R(1) | R(2); I.srcC = R(3); I.rd = I.srcAB | I.srcC
    elif op.startswith("v_"):
        I.cls = "valu"
        base = op.replace("_e32", "").replace("_e64", "").replace("_dpp", "").replace("_sdwa", "")
        if base in TRANS: I.cls = "trans"
        if base.startswith("v_dot"): I.cls = "dot"
        I.dpp = ("quad_perm" in mods or "row_" in mods or "wave_" in mods)
        if base.startswith("v_cmpx"):
            I.wr = regs_of("exec") | R(0); I.rd = allfrom(1)
        elif base.startswith("v_cmp"):
            I.wr = R(0); I.rd = allfrom(1)
        elif base.startswith("v_permlane") and "swap" in base:
            I.wr = R(0) | R(1); I.rd = R(0) | R(1); I.cls = "permlane"
        elif base in ("v_add_co_u32", "v_sub_co_u32", "v_addc_co_u32", "v_subb_co_u32", "v_subrev_co_u32"):
            I.wr = R(0) | R(1); I.rd = allfrom(2)
        else:
            I.wr = R(0); I.rd = allfrom(1)
            if base.startswith(("v_fmac", "v_mac", "v_dot2c", "v_pk_fmac", "v_writelane")): I.rd |= R(0)
            if base == "v_cndmask_b32" and len(parts) == 3: I.rd |= regs_of("vcc")
            if I.dpp:
                I.rd |= R(0) if False else set()
        if base in ("v_readfirstlane_b32", "v_readlane_b32"): I.cls = "readlane"
    elif op.startswith("ds_"):
        I.cls = "ds"
        if op.startswith(("ds_read", "ds_bpermute", "ds_permute", "ds_swizzle")):
            I.wr = R(0); I.rd = allfrom(1)
            if "addtid" in op: I.rd |= regs_of("m0")
        else:
            I.rd = allfrom(0)
            if "addtid" in op: I.rd |= regs_of("m0")
    elif op.startswith(("buffer_", "global_")):
        I.cls = "vmem"
        is_lds = bool(re.search(r"\blds\b", mods)) or "load_lds" in op
        if "store" in op:
            I.rd = allfrom(0); I.cls = "vstore"
        elif is_lds:
            I.rd = allfrom(0) | regs_of("m0"); I.lds_dma = True
        else:
            I.wr = R(0); I.rd = allfrom(1)
            if "d16" in op: I.rd |= R(0)
    elif op.startswith("s_"):
        I.cls = "salu"
        if op == "s_nop":
            I.ws = int(parts[0], 0) + 1; I.cls = "nop"
        elif op.startswith("s_load") or op.startswith("s_buffer_load"):
            I.cls = "smem"; I.wr = R(0); I.rd = allfrom(1)
        elif op.startswith(NODST_S):
            I.rd = allfrom(0)
            if op.startswith("s_waitcnt"): I.cls = "wait"
            if op.startswith(("s_cbranch", "s_branch", "s_endpgm")): I.cls = "branch"
        else:
            I.wr = R(0); I.rd = allfrom(1)
            if op in ("s_addk_i32", "s_mulk_i32"): I.rd |= R(0)
    else:
        raise ValueError("unknown instr: " + text)
    return I

VALUISH = ("valu", "trans", "dot", "permlane", "readlane")

class Asm:
    def __init__(s):
        s.ins = []
        s.nlab = 0
        s.tag = None
    def I(s, text, noauto=False):
        last = None
        for ln in text.split("\n"):
            ln = ln.strip()
            if not ln: continue
            I = parse(ln); I.tag = s.tag; I.noauto = noauto
            s.ins.append(I); last = I
        return last
    __call__ = I
    def c(s, txt): s.I("; " + txt)
    def label(s, name): s.I(name + ":")
    def newlab(s, p="L"):
        s.nlab += 1; return f"{p}_{s.nlab}"
    def wait_vm(s, handle):
        I = Ins(); I.cls = "waitvm"; I.need_vm = handle; I.tag = s.tag; I.ws = 0; I.text = "; wait_vm"
        s.ins.append(I)
    def wait_lg(s, handle):
        I = Ins(); I.cls = "waitlg"; I.need_vm = handle; I.tag = s.tag; I.ws = 0; I.text = "; wait_vm"
        s.ins.append(I)
    def wait_lgkm0(s): s.I("s_waitcnt lgkmcnt(0)")
    def begin(s, tag):
        assert s.tag is None
        s.tag = tag
        I = Ins(); I.cls = "cbegin"; I.ws = 0; I.text = "; reset"; s.ins.append(I)
    def end(s):
        s.tag = None
        I = Ins(); I.cls = "cend"; I.ws = 0; I.text = "; reset"; s.ins.append(I)
    def reset(s):
        I = Ins(); I.cls = "reset"; I.ws = 0; I.text = "; reset"; s.ins.append(I)

    def finalize(s, verbose=False):
        out = []
        vmq = []
        lgq = []
        smem_pending = set()
        stats = {"nops": 0, "waits": 0}
        def emit(I):
            out.append(I)
        def mk(text):
            I = parse(text); return I
        def count_after(q, X):
            k = q.index(X)
            return sum(1 for Y in q[k+1:] if Y.tag is None or Y.tag == X.tag)
        def vm_count_after(X): return count_after(vmq, X)
        def retire_upto(q, n):
            last = None
            for X in q:
                if count_after(q, X) >= n: last = X
            if last is not None: del q[:q.index(last)+1]
        saved = None
        def do_wait(vm=None, lg=None):
            parts = []
            if vm is not None: parts.append(f"vmcnt({min(vm,63)})")
            if lg is not None: parts.append(f"lgkmcnt({min(lg,15)})")
            emit(mk("s_waitcnt " + " ".join(parts))); stats["waits"] += 1
        def retire_vm(X):
            k = vmq.index(X); del vmq[:k+1]
        def retire_lg(X):
            k = lgq.index(X); del lgq[:k+1]
        def dist_back(pred, maxd):
            d = 0
            for P in reversed(out):
                if d >= maxd: break
                if P.ws > 0 or P.is_label:
                    yield P, d
                d += P.ws
        for I in s.ins:
            if I.cls == "reset":
                vmq.clear(); lgq.clear(); smem_pending.clear(); continue
            if I.cls == "cbegin":
                saved = (list(vmq), list(lgq), set(smem_pending)); continue
            if I.cls == "cend":
                sv, sl, ss = saved
                vmq[:] = sv + [X for X in vmq if X not in sv]
                lgq[:] = sl + [X for X in lgq if X not in sl]
                smem_pending |= ss; saved = None; continue
            if I.cls == "waitvm":
                X = I.need_vm
                if X in vmq:
                    do_wait(vm=vm_count_after(X)); retire_vm(X)
                continue
            if I.cls == "waitlg":
                X = I.need_vm
                if X in lgq:
                    do_wait(lg=count_after(lgq, X)); retire_lg(X)
                continue
            if I.comment or I.is_label:
                emit(I); continue
            if I.cls == "wait":
                m = re.search(r"vmcnt\((\d+)\)", I.text)
                if m:
                    n = int(m.group(1))
                    retire_upto(vmq, n)
                m = re.search(r"lgkmcnt\((\d+)\)", I.text)
                if m:
                    n = int(m.group(1))
                    if n == 0: smem_pending.clear()
                    retire_upto(lgq, n)
                emit(I); continue
            touched = I.rd | I.wr
            if not I.noauto:
                needvm = None; needlg = None
                for X in vmq:
                    if X.wr & touched: needvm = X
                for X in lgq:
                    if X.wr & touched: needlg = X
                if touched & smem_pending:
                    do_wait(lg=0); smem_pending.clear(); lgq.clear(); needlg = None
                vmn = lgn = None
                if needvm is not None: vmn = vm_count_after(needvm)
                if needlg is not None: lgn = count_after(lgq, needlg)
                if vmn is not None or lgn is not None:
                    do_wait(vm=vmn, lg=lgn)
                    if needvm is not None: retire_vm(needvm)
                    if needlg is not None: retire_lg(needlg)
            need = 0
            isv = I.cls in VALUISH
            vrd = {r for r in I.rd if r[0] in "va"}; vwr = {r for r in I.wr if r[0] in "va"}
            srd = {r for r in I.rd if r[0] == "s"}
            for P, d in dist_back(None, 21):
                req = 0
                if P.is_label: continue
                pv = P.cls in VALUISH
                pvw = {r for r in P.wr if r[0] in "va"}; psw = {r for r in P.wr if r[0] == "s"}
                if P.cls == "mfma":
                    big = 12 if P.passes == 8 else 8
                    ov = 10 if P.passes == 8 else 6
                    if I.cls == "mfma":
                        if P.wr & I.srcAB: req = max(req, big)
                        if P.wr & I.srcC:
                            if not (P.wr == I.srcC and P.passes == I.passes): req = max(req, ov)
                        if (P.wr & I.wr) and not (P.wr == I.srcC and P.wr == I.wr): req = max(req, big)
                    else:
                        if P.wr & (vrd | vwr): req = max(req, big)
                        if isv and (P.srcC & vwr): req = max(req, 7 if P.passes == 8 else 3)
                if pv:
                    if I.cls == "mfma" and (pvw & vrd): req = max(req, 2)
                    if I.cls == "mfma" and (("s", 126) in psw): req = max(req, 4)
                    if I.cls in ("vmem", "vstore") and (psw & srd): req = max(req, 5)
                    if isv and (psw & srd): req = max(req, 2)
                    if I.cls == "readlane" and (psw & srd): req = max(req, 4)
                    if isv and I.dpp and (pvw & vrd): req = max(req, 2)
                    if isv and I.dpp and (("s", 126) in psw): req = max(req, 5)
                    if I.cls == "permlane" and (pvw & vrd): req = max(req, 2)
                    if I.cls == "readlane" and (pvw & vrd): req = max(req, 1)
                    if P.cls == "trans" and (pvw & (vrd | vwr)): req = max(req, 1)
                    if P.cls == "dot" and (pvw & (vrd | vwr)):
                        same_acc = (I.cls == "dot" and I.op == P.op and len(I.ops) >= 1 and
                                    not (pvw & (regs_of(I.ops[1]) | regs_of(I.ops[2]))))
                        if not same_acc: req = max(req, 3)
                    if "op_sel" in P.mods and isv and (pvw & (vrd | vwr)) and not P.op.startswith("v_pk"): req = max(req, 1)
                if P.cls == "salu" and (("s", 124) in P.wr) and (I.lds_dma or "addtid" in I.op): req = max(req, 1)
                if P.cls == "vstore" and ("x4" in P.op or "x3" in P.op):
                    dat = regs_of(P.ops[0])
                    if dat & vwr: req = max(req, 2 if isv else 1)
                if req > d: need = max(need, req - d)
            while need > 0:
                k = min(need, 16)
                emit(mk(f"s_nop {k-1}")); need -= k; stats["nops"] += 1
            emit(I)
            if I.cls in ("vmem", "vstore"): vmq.append(I)
            elif I.cls == "ds": lgq.append(I)
            elif I.cls == "smem": smem_pending |= I.wr
        if verbose: print(stats)
        lines = []
        for I in out:
            if I.is_label: lines.append(I.text.strip())
            elif I.text.startswith("; wait_vm") or I.text.startswith("; reset"): continue
            else: lines.append("  " + I.text)
        return "\n".join(lines) + "\n"
```

```python
from asmlib import *
X1_OFF   = 0x000000
H1S_OFF  = 0x300000
MT_OFF   = 0x600000
WVOT_OFF = 0x620000
WS_SIZE  = 0x10000000
SRD3     = 0x00020000
LOG2E = 1.4426950408889634
SCALE = 192 ** -0.5
AUX = 147456

class RA:
    def __init__(s, start=0, limit=256): s.n = start; s.limit = limit
    def get(s, cnt=1, align=1):
        s.n = (s.n + align - 1) // align * align
        r = s.n; s.n += cnt
        assert s.n <= s.limit, f"out of regs {s.n}"
        return r

def srd(a, base, size):
    a(f"s_mov_b32 s{base+2}, {size}")
    a(f"s_mov_b32 s{base+3}, 0x{SRD3:08x}")

def ln_stats(a, xp, vsum, vsq, t0, t1, vones):
    a(f"v_mov_b32 v{vsum}, 0"); a(f"v_mov_b32 v{vsq}, 0"); a(f"v_mov_b32 v{t0}, 0"); a(f"v_mov_b32 v{t1}, 0")
    for i, r in enumerate(xp):
        s_, q_ = (vsum, vsq) if i % 2 == 0 else (t0, t1)
        a(f"v_dot2c_f32_bf16 v{s_}, v{r}, v{vones}")
        a(f"v_dot2c_f32_bf16 v{q_}, v{r}, v{r}")
    a(f"v_add_f32 v{vsum}, v{vsum}, v{t0}")
    a(f"v_add_f32 v{vsq}, v{vsq}, v{t1}")
    for m in ("quad_perm:[1,0,3,2]", "quad_perm:[2,3,0,1]", "row_half_mirror"):
        a(f"v_add_f32_dpp v{vsum}, v{vsum}, v{vsum} {m} row_mask:0xf bank_mask:0xf")
        a(f"v_add_f32_dpp v{vsq}, v{vsq}, v{vsq} {m} row_mask:0xf bank_mask:0xf")
    a(f"v_mul_f32 v{vsum}, {fbits(1.0/192)}, v{vsum}")
    a(f"v_mul_f32 v{t0}, v{vsum}, v{vsum}")
    a(f"v_mov_b32 v{t1}, {fbits(1.0/192)}")
    a(f"v_fma_f32 v{vsq}, v{vsq}, v{t1}, -v{t0}")
    a(f"v_max_f32 v{vsq}, 0, v{vsq}")
    a(f"v_add_f32 v{vsq}, {fbits(1e-5)}, v{vsq}")
    a(f"v_rsq_f32 v{vsq}, v{vsq}")
    a(f"v_mul_f32 v{vsum}, v{vsum}, v{vsq}")
    a(f"v_sub_f32 v{vsum}, 0, v{vsum}")

def ln_apply(a, xp, outp, vnb, vrs, tmp):
    for i, r in enumerate(xp):
        t = tmp + 2 * (i % 2)
        a(f"v_lshlrev_b32 v{t}, 16, v{r}")
        a(f"v_and_b32 v{t+1}, 0xffff0000, v{r}")
        a(f"v_pk_fma_f32 v[{t}:{t+1}], v[{t}:{t+1}], v[{vrs}:{vrs+1}], v[{vnb}:{vnb+1}] op_sel_hi:[1,0,0]")
        a(f"v_cvt_pk_bf16_f32 v{outp[i]}, v{t}, v{t+1}")

def kernel_a(name, opts={}):
    a = Asm()
    ST = opts.get("stamp") == "1"
    nst = [0]
    def stamp():
        if ST:
            a(f"s_memtime s[{48+2*nst[0]}:{49+2*nst[0]}]"); nst[0] += 1
    R = RA(1, 256)
    sX, sWQ, sWO, sWS, sOS, sWSP = 4, 8, 12, 16, 20, 24
    sW, sN384, sXD, sWb, sWob, sM, sT0, sT1, sT2, sJT, sIT, sFA, sFB, sFst, sF = range(28, 43)
    vL = R.get(); vXoff = R.get(); vH1 = R.get(); vXD = R.get(); vWq = R.get(); vWo = R.get()
    vA = [[R.get() for i in range(3)] for s in range(3)]
    vHL = R.get(); vB0 = R.get(); vB1 = R.get(); vD = [R.get() for i in range(3)]; vS = R.get(); vSw = R.get()
    vF = R.get(); vFs = R.get(); vStR = R.get(); vOnes = R.get(); vDum = R.get()
    st = R.get(4, 2)
    tmp = R.get(16, 4)
    xln = R.get(12, 4); xd = R.get(12, 4)
    hf = R.get(48, 4); acc = R.get(48, 4); accv = R.get(24, 4); wf = R.get(24, 4)
    hp = R.get(12, 4)
    HF = lambda ks, tg: hf + (ks * 2 + tg) * 4
    ACC = lambda i, tg: acc + (i * 2 + tg) * 4
    ACCV = lambda i, tg: accv + (i * 2 + tg) * 4
    FA = lambda ks: ks * 4
    FB = lambda ks: 24 + ks * 4

    a.label(name)
    a("s_cmp_ge_u32 s2, 256")
    a(f"s_cbranch_scc1 {name}_end")
    if ST: a("s_memrealtime s[96:97]")
    stamp()
    for i, b in enumerate((sX, sWQ, sWO, sWS, sOS)):
        a(f"s_load_dwordx2 s[{b}:{b+1}], s[0:1], {8*i}")
    a(f"s_load_dwordx2 s[{sWSP}:{sWSP+1}], s[0:1], 56")
    t = tmp
    a(f"v_and_b32 v{vL}, 63, v0")
    a(f"v_lshrrev_b32 v{t}, 6, v0")
    a(f"v_readfirstlane_b32 s{sW}, v{t}")
    srd(a, sX, 3145728); srd(a, sWQ, 221184); srd(a, sWO, 73728); srd(a, sWS, 221184); srd(a, sOS, 73728); srd(a, sWSP, WS_SIZE)
    g_, l16, r_, c4, t8, c8 = t, t + 1, t + 2, t + 3, t + 4, t + 5
    u0, u1, u2 = t + 6, t + 7, t + 8
    a(f"v_lshrrev_b32 v{g_}, 4, v{vL}")
    a(f"v_and_b32 v{l16}, 15, v{vL}")
    a(f"v_bfe_u32 v{r_}, v{vL}, 2, 2")
    a(f"v_and_b32 v{c4}, 3, v{vL}")
    a(f"v_lshrrev_b32 v{t8}, 3, v{vL}")
    a(f"v_and_b32 v{c8}, 7, v{vL}")
    a(f"v_mul_u32_u24 v{u0}, 393216, v{t8}")
    a(f"v_lshl_add_u32 v{vXoff}, v{c8}, 4, v{u0}")
    a(f"s_lshl_b32 s{sT0}, s2, 2")
    a(f"s_add_u32 s{sT0}, s{sT0}, s{sW}")
    a(f"s_mul_i32 s{sN384}, s{sT0}, 384")
    a(f"s_mul_i32 s{sXD}, s2, 1536")
    a(f"s_mul_i32 s{sT1}, s{sW}, 96")
    a(f"s_add_u32 s{sXD}, s{sXD}, s{sT1}")
    a(f"v_mul_u32_u24 v{u0}, 393216, v{c8}")
    a(f"v_and_b32 v{u1}, 1, v{t8}")
    a(f"v_mul_u32_u24 v{u1}, 384, v{u1}")
    a(f"v_lshl_add_u32 v{u0}, v{g_}, 3, v{u0}")
    a(f"v_add_u32 v{vXD}, v{u0}, v{u1}")
    a(f"s_and_b32 s{sT1}, s{sW}, 1")
    a(f"s_lshl_b32 s{sT1}, s{sT1}, 2")
    a(f"v_and_b32 v{u0}, 2, v{t8}")
    a(f"v_xor_b32 v{u0}, v{u0}, v{c8}")
    a(f"v_xor_b32 v{u0}, s{sT1}, v{u0}")
    a(f"v_lshlrev_b32 v{u0}, 4, v{u0}")
    a(f"v_mul_u32_u24 v{u1}, 1152, v{t8}")
    a(f"v_add_u32 v{vWq}, v{u0}, v{u1}")
    a(f"v_mul_u32_u24 v{u1}, 384, v{t8}")
    a(f"v_add_u32 v{vWo}, v{u0}, v{u1}")
    a(f"s_mul_i32 s{sWb}, s{sW}, 9216")
    a(f"s_mul_i32 s{sWob}, s{sW}, 3072")
    a(f"s_mul_i32 s{sM}, s{sW}, 3072")
    a(f"s_cmp_ge_u32 s2, 36")
    a(f"s_cselect_b32 s{sT1}, 36, 0")
    a(f"s_cselect_b32 s{sT2}, 768, 0")
    a(f"s_sub_u32 s{sF}, s2, s{sT1}")
    a(f"s_mul_i32 s{sJT}, s{sF}, 171")
    a(f"s_lshr_b32 s{sJT}, s{sJT}, 9")
    a(f"s_mul_i32 s{sT1}, s{sJT}, 3")
    a(f"s_sub_u32 s{sT1}, s{sF}, s{sT1}")
    a(f"s_lshl_b32 s{sIT}, s{sT1}, 2")
    a(f"s_add_u32 s{sIT}, s{sIT}, s{sW}")
    a(f"s_mul_i32 s{sFA}, s{sIT}, 18432")
    a(f"s_add_u32 s{sFA}, s{sFA}, s{sT2}")
    a(f"s_mul_i32 s{sFB}, s{sJT}, 18432")
    a(f"s_add_u32 s{sFB}, s{sFB}, 384")
    a(f"s_cmp_ge_u32 s2, 36")
    a(f"s_cselect_b32 s{sFst}, {WVOT_OFF-MT_OFF}, 0")
    a(f"s_add_u32 s{sFst}, s{sFst}, {MT_OFF}")
    a(f"s_mul_i32 s{sT1}, s{sJT}, 6144")
    a(f"s_add_u32 s{sFst}, s{sFst}, s{sT1}")
    a(f"s_lshl_b32 s{sT1}, s{sIT}, 9")
    a(f"s_add_u32 s{sFst}, s{sFst}, s{sT1}")
    a(f"v_mul_u32_u24 v{u0}, 1152, v{l16}")
    a(f"v_lshl_add_u32 v{vF}, v{g_}, 4, v{u0}")
    a("s_waitcnt lgkmcnt(0)")
    stamp()
    a(f"s_cmp_lg_u32 s{sW}, 3")
    a(f"s_cbranch_scc1 {name}_nopf")
    a.begin("pf")
    a(f"s_lshr_b32 s{sT1}, s2, 3")
    a(f"s_and_b32 s{sT1}, s{sT1}, 31")
    a(f"s_mul_i32 s{sT2}, s{sT1}, 6912")
    a(f"s_add_u32 s{sT2}, s{sT2}, 768")
    a(f"v_lshrrev_b32 v{u0}, 2, v{vL}")
    a(f"v_min_u32 v{u0}, 5, v{u0}")
    a(f"v_mul_u32_u24 v{u0}, 1152, v{u0}")
    a(f"v_min_u32 v{u1}, 2, v{c4}")
    a(f"v_lshl_add_u32 v{u0}, v{u1}, 7, v{u0}")
    a(f"buffer_load_dword v{vDum}, v{u0}, s[{sWQ}:{sWQ+3}], s{sT2} offen")
    a(f"s_mul_i32 s{sT2}, s{sT1}, 2304")
    a(f"v_min_u32 v{u1}, 17, v{vL}")
    a(f"v_lshlrev_b32 v{u1}, 7, v{u1}")
    a(f"buffer_load_dword v{vDum}, v{u1}, s[{sWO}:{sWO+3}], s{sT2} offen", noauto=True)
    a.end()
    a.label(f"{name}_nopf")
    a("s_cmp_ge_u32 s2, 72")
    a(f"s_cbranch_scc1 {name}_nofl")
    a.begin("fa")
    for ks in range(6):
        a(f"buffer_load_dwordx4 a[{FA(ks)}:{FA(ks)+3}], v{vF}, s[{sWS}:{sWS+3}], s{sFA} offen offset:{ks*64}")
    a.end()
    a("s_cmp_ge_u32 s2, 36")
    a(f"s_cbranch_scc1 {name}_nofl")
    a.begin("mt")
    for ks in range(6):
        a(f"buffer_load_dwordx4 a[{FB(ks)}:{FB(ks)+3}], v{vF}, s[{sWS}:{sWS+3}], s{sFB} offen offset:{ks*64}")
    a.end()
    a.label(f"{name}_nofl")
    for k in range(3):
        a(f"buffer_load_dwordx4 v[{xln+4*k}:{xln+4*k+3}], v{vXoff}, s[{sX}:{sX+3}], s{sN384} offen offset:{k*128}")
    for tg in range(2):
        for i in range(3):
            r = xd + (i * 2 + tg) * 2
            a(f"buffer_load_dwordx2 v[{r}:{r+1}], v{vXD}, s[{sX}:{sX+3}], s{sXD} offen offset:{tg*768+i*32}")
    def dma_unit(kind, ks, slot):
        last = None
        if kind in ("q", "k", "v"):
            mat = "qkv".index(kind)
            a(f"s_add_u32 s{sT0}, s{sWb}, {ks*36864 + mat*384}")
            voff, srd_ = vWq, sWQ
        else:
            a(f"s_add_u32 s{sT0}, s{sWob}, {ks*12288}")
            voff, srd_ = vWo, sWO
        for cb in range(3):
            a(f"s_add_u32 m0, s{sM}, {slot*12288 + cb*896}")
            last = a(f"buffer_load_dwordx4 v{voff}, s[{srd_}:{srd_+3}], s{sT0} offen offset:{cb*128} lds")
        return last
    H = {}
    for ks in range(6):
        H["q", ks] = dma_unit("q", ks, 2 * ks)
        H["k", ks] = dma_unit("k", ks, 2 * ks + 1)
    a(f"v_mul_u32_u24 v{u0}, 3072, v{g_}")
    a(f"v_lshl_add_u32 v{u0}, v{r_}, 7, v{u0}")
    a(f"v_bfe_u32 v{u1}, v{vL}, 2, 3")
    a(f"v_and_b32 v{u1}, 6, v{u1}")
    a(f"v_bfe_u32 v{u2}, v{vL}, 1, 1")
    a(f"v_or_b32 v{u1}, v{u1}, v{u2}")
    a(f"v_lshl_add_u32 v{u0}, v{u1}, 4, v{u0}")
    a(f"v_and_b32 v{u1}, 1, v{vL}")
    a(f"v_lshl_add_u32 v{u0}, v{u1}, 3, v{u0}")
    for i in range(3):
        a(f"s_mul_i32 s{sT0}, s{sW}, 3")
        a(f"s_add_u32 s{sT0}, s{sT0}, {i}")
        a(f"s_and_b32 s{sT1}, s{sT0}, 3")
        a(f"s_lshl_b32 s{sT1}, s{sT1}, 5")
        a(f"s_lshr_b32 s{sT2}, s{sT0}, 2")
        a(f"s_lshl_b32 s{sT2}, s{sT2}, 10")
        a(f"v_xor_b32 v{vA[0][i]}, s{sT1}, v{u0}")
        a(f"v_add_u32 v{vA[0][i]}, s{sT2}, v{vA[0][i]}")
        a(f"v_add_u32 v{vA[1][i]}, 49152, v{vA[0][i]}")
        a(f"v_add_u32 v{vA[2][i]}, 98304, v{vA[0][i]}")
    a(f"s_mul_i32 s{sT0}, s{sW}, 3072")
    a(f"s_add_u32 s{sT0}, s{sT0}, {AUX}")
    a(f"v_xor_b32 v{u0}, v{c8}, v{t8}")
    a(f"v_lshlrev_b32 v{u0}, 4, v{u0}")
    a(f"v_mul_u32_u24 v{u1}, 384, v{t8}")
    a(f"v_add3_u32 v{vHL}, v{u0}, v{u1}, s{sT0}")
    a(f"v_and_b32 v{u2}, 7, v{l16}")
    a(f"v_xor_b32 v{u0}, v{g_}, v{u2}")
    a(f"v_lshlrev_b32 v{u0}, 4, v{u0}")
    a(f"v_mul_u32_u24 v{u1}, 384, v{l16}")
    a(f"v_add_u32 v{u1}, {AUX}, v{u1}")
    a(f"v_add_u32 v{vB0}, v{u0}, v{u1}")
    a(f"v_xor_b32 v{vB1}, 64, v{vB0}")
    for i in range(3):
        a(f"s_mul_i32 s{sT0}, s{sW}, 6")
        a(f"s_add_u32 s{sT0}, s{sT0}, {2*i}")
        a(f"v_lshrrev_b32 v{u0}, 1, v{g_}")
        a(f"v_add_u32 v{u0}, s{sT0}, v{u0}")
        a(f"v_and_b32 v{vD[i]}, 7, v{u0}")
        a(f"v_xor_b32 v{vD[i]}, v{vD[i]}, v{u2}")
        a(f"v_lshl_add_u32 v{vD[i]}, v{vD[i]}, 4, v{u1}")
        a(f"v_lshrrev_b32 v{u0}, 3, v{u0}")
        a(f"v_lshl_add_u32 v{vD[i]}, v{u0}, 7, v{vD[i]}")
        a(f"v_and_b32 v{u0}, 1, v{g_}")
        a(f"v_lshl_add_u32 v{vD[i]}, v{u0}, 3, v{vD[i]}")
    a(f"v_lshlrev_b32 v{vS}, 4, v{vL}")
    a(f"v_add_u32 v{vS}, {AUX}, v{vS}")
    a(f"s_lshl_b32 s{sT0}, s{sW}, 11")
    a(f"v_add_u32 v{vSw}, s{sT0}, v{vS}")
    a(f"s_lshr_b32 s{sT0}, s{sW}, 1")
    a(f"s_lshl_b32 s{sT0}, s{sT0}, 2")
    a(f"s_and_b32 s{sT1}, s2, 3")
    a(f"s_or_b32 s{sT0}, s{sT0}, s{sT1}")
    a(f"v_xor_b32 v{u0}, s{sT0}, v{c8}")
    a(f"v_mul_u32_u24 v{u1}, 393216, v{t8}")
    a(f"v_lshl_add_u32 v{vH1}, v{u0}, 4, v{u1}")
    a(f"v_lshrrev_b32 v{u0}, 1, v{g_}")
    a(f"v_lshl_add_u32 v{u0}, v{u0}, 4, v{l16}")
    a(f"v_lshlrev_b32 v{u0}, 4, v{u0}")
    a(f"v_and_b32 v{u1}, 1, v{g_}")
    a(f"v_lshl_add_u32 v{vFs}, v{u1}, 3, v{u0}")
    vFs2 = R.get()
    a(f"v_lshl_add_u32 v{u0}, v{u1}, 4, v{l16}")
    a(f"v_lshlrev_b32 v{u0}, 4, v{u0}")
    a(f"v_lshrrev_b32 v{u1}, 1, v{g_}")
    a(f"v_lshl_add_u32 v{vFs2}, v{u1}, 3, v{u0}")
    a(f"v_lshl_add_u32 v{u0}, v{g_}, 3, v{r_}")
    a(f"v_lshlrev_b32 v{u0}, 5, v{u0}")
    a(f"v_lshl_add_u32 v{u0}, v{c4}, 3, v{u0}")
    a(f"v_add_u32 v{vStR}, {AUX+8192}, v{u0}")
    a(f"v_mov_b32 v{vOnes}, 0x3f803f80")
    a(f"v_lshrrev_b32 v{u0}, 3, v{l16}")
    a(f"v_lshrrev_b32 v{u1}, 1, v{g_}")
    a(f"v_cmp_eq_u32 s[44:45], v{u0}, v{u1}")
    vStg = R.get()
    a(f"v_lshrrev_b32 v{u0}, 1, v{vL}")
    a(f"v_mul_u32_u24 v{u0}, 384, v{u0}")
    a(f"v_and_b32 v{u1}, 1, v{vL}")
    a(f"v_lshl_add_u32 v{vStg}, v{u1}, 4, v{u0}")

    stamp()
    xs = [xln + i for i in range(12)]
    ln_stats(a, xs, st + 2, st, tmp, tmp + 1, vOnes)
    ln_apply(a, xs, [hp + i for i in range(12)], st + 2, st, tmp)
    for k in range(3):
        a(f"ds_write_b128 v{vHL}, v[{hp+4*k}:{hp+4*k+3}] offset:{k*128}")
    stamp()
    def fold_finish(scale, vFs=vFs):
        d = tmp + 8
        if scale is not None:
            for r in range(4): a(f"v_mul_f32 v{d+r}, {fbits(scale)}, v{d+r}")
        a(f"v_cvt_pk_bf16_f32 v{d+4}, v{d}, v{d+1}")
        a(f"v_cvt_pk_bf16_f32 v{d+5}, v{d+2}, v{d+3}")
        a(f"buffer_store_dwordx2 v[{d+4}:{d+5}], v{vFs}, s[{sWSP}:{sWSP+3}], s{sFst} offen")
    a("s_cmp_ge_u32 s2, 36")
    a(f"s_cbranch_scc1 {name}_nomt")
    a.begin("mt")
    d = tmp + 8
    for ks in range(6):
        c = "0" if ks == 0 else f"v[{d}:{d+3}]"
        a(f"v_mfma_f32_16x16x32_bf16 v[{d}:{d+3}], a[{FA(ks)}:{FA(ks)+3}], a[{FB(ks)}:{FB(ks)+3}], {c}")
    fold_finish(SCALE * LOG2E)
    a.end()
    a.label(f"{name}_nomt")

    def trread(dst, set_, i, slot, h):
        a(f"ds_read_b64_tr_b16 v[{dst+2*h}:{dst+2*h+1}], v{vA[set_][i]} offset:{(slot%4)*12288 + h*512}")
    def read_frags(dst):
        for ks in range(6):
            for tg in range(2):
                b = vB0 if ks % 2 == 0 else vB1
                r = dst + (ks * 2 + tg) * 4
                a(f"ds_read_b128 v[{r}:{r+3}], v{b} offset:{tg*6144 + (ks//2)*128}")
    refill = {1: [("v", 0, 0), ("v", 1, 1)], 2: [("v", 2, 2), ("v", 3, 3)], 3: [("v", 4, 4), ("v", 5, 5)],
              4: [("o", 0, 6), ("o", 1, 7)], 5: [("o", 2, 8), ("o", 3, 9)], 6: [("o", 4, 10), ("o", 5, 11)]}
    def do_refill(step):
        for kind, ks, slot in refill[step]:
            H[kind, ks] = dma_unit(kind, ks, slot)
    for ks in range(6):
        a.c(f"QK step {ks}")
        a.wait_vm(H["k", ks])
        if ks == 0: a("s_waitcnt lgkmcnt(0)")
        a("s_barrier")
        stamp()
        if ks == 0: read_frags(hf)
        for m in range(2):
            slot = 2 * ks + m
            for i in range(3):
                for h in range(2):
                    trread(wf + (m * 3 + i) * 4, slot // 4, i, slot, h)
        if ks >= 1: do_refill(ks)
        if ks == 1:
            a("s_sub_u32 s46, s2, 36")
            a("s_cmp_ge_u32 s46, 36")
            a(f"s_cbranch_scc1 {name}_nostg")
            a(f"s_cmp_ge_u32 s{sW}, 3")
            a(f"s_cbranch_scc1 {name}_nostg")
            a.begin("stg")
            a(f"s_mul_i32 s{sT0}, s{sW}, 24576")
            a(f"s_lshl_b32 s{sT1}, s{sJT}, 5")
            a(f"s_add_u32 s{sT0}, s{sT0}, s{sT1}")
            a(f"s_lshl_b32 s{sT1}, s{sW}, 11")
            a(f"s_add_u32 m0, s{sT1}, {AUX+8192}")
            a(f"s_add_u32 s{sT2}, s{sT0}, 12288")
            a(f"buffer_load_dwordx4 v{vStg}, s[{sOS}:{sOS+3}], s{sT0} offen lds")
            a(f"s_add_u32 m0, s{sT1}, {AUX+8192+1024}")
            a("s_nop 0")
            a(f"buffer_load_dwordx4 v{vStg}, s[{sOS}:{sOS+3}], s{sT2} offen lds")
            a.end()
            a.label(f"{name}_nostg")
        for m in range(2):
            for i in range(3):
                for tg in range(2):
                    A_ = wf + (m * 3 + i) * 4; D = ACC(m * 3 + i, tg)
                    c = "0" if ks == 0 else f"v[{D}:{D+3}]"
                    a(f"v_mfma_f32_16x16x32_bf16 v[{D}:{D+3}], v[{A_}:{A_+3}], v[{HF(ks,tg)}:{HF(ks,tg)+3}], {c}")
    a.c("S partial")
    pk = wf
    for m in range(2):
        for i in range(3):
            for tg in range(2):
                D = ACC(m * 3 + i, tg); p = pk + m * 12 + (i * 2 + tg) * 2
                a(f"v_cvt_pk_bf16_f32 v{p}, v{D}, v{D+1}")
                a(f"v_cvt_pk_bf16_f32 v{p+1}, v{D+2}, v{D+3}")
    sp = tmp
    for i in range(3):
        for tg in range(2):
            q = pk + (i * 2 + tg) * 2; k = pk + 12 + (i * 2 + tg) * 2; D = sp + tg * 4
            c = "0" if i == 0 else f"v[{D}:{D+3}]"
            a(f"v_mfma_f32_16x16x16_bf16 v[{D}:{D+3}], v[{k}:{k+1}], v[{q}:{q+1}], {c}")
    for i in range(3):
        for tg in range(2):
            r = xd + (i * 2 + tg) * 2; D = ACC(i, tg)
            a(f"v_lshlrev_b32 v{D}, 16, v{r}")
            a(f"v_and_b32 v{D+1}, 0xffff0000, v{r}")
            a(f"v_lshlrev_b32 v{D+2}, 16, v{r+1}")
            a(f"v_and_b32 v{D+3}, 0xffff0000, v{r+1}")
    for tg in range(2):
        a(f"ds_write_b128 v{vSw}, v[{sp+4*tg}:{sp+4*tg+3}] offset:{tg*1024}")
    def vgemm(kss):
        for ks in kss:
            for i in range(3):
                for h in range(2):
                    trread(wf + ((ks % 2) * 3 + i) * 4, ks // 4, i, ks, h)
        return
    def vmfma(kss):
        for ks in kss:
            for i in range(3):
                for tg in range(2):
                    B_ = wf + ((ks % 2) * 3 + i) * 4; D = ACCV(i, tg)
                    c = "0" if ks == 0 else f"v[{D}:{D+3}]"
                    a(f"v_mfma_f32_16x16x32_bf16 v[{D}:{D+3}], v[{HF(ks,tg)}:{HF(ks,tg)+3}], v[{B_}:{B_+3}], {c}")
    a.c("B6")
    a.wait_vm(H["v", 1])
    a("s_waitcnt lgkmcnt(0)")
    a("s_barrier")
    stamp()
    SP = lambda w_, tg: acc + 24 + 0 if False else None
    spr = hp
    sreg = []
    pool = [acc + 24 + 4 * j for j in range(6)] + [hp, hp + 4]
    for w_ in range(4):
        for tg in range(2):
            r = pool[w_ * 2 + tg]
            a(f"ds_read_b128 v[{r}:{r+3}], v{vS} offset:{(w_*2+tg)*1024}")
    vgemm([0, 1])
    do_refill(6)
    P = xln
    for tg in range(2):
        r0, r1, r2, r3 = [pool[w_ * 2 + tg] for w_ in range(4)]
        for j in range(2):
            a(f"v_pk_add_f32 v[{r0+2*j}:{r0+2*j+1}], v[{r0+2*j}:{r0+2*j+1}], v[{r1+2*j}:{r1+2*j+1}]")
            a(f"v_pk_add_f32 v[{r2+2*j}:{r2+2*j+1}], v[{r2+2*j}:{r2+2*j+1}], v[{r3+2*j}:{r3+2*j+1}]")
        for j in range(2):
            a(f"v_pk_add_f32 v[{r0+2*j}:{r0+2*j+1}], v[{r0+2*j}:{r0+2*j+1}], v[{r2+2*j}:{r2+2*j+1}]")
    vmfma([0, 1])
    cs = SCALE * LOG2E
    for tg in range(2):
        s0 = pool[tg]; m = xln + 4 + tg * 4; m2 = m + 1; l_ = m + 2; l2 = m + 3
        a(f"v_max_f32 v{m}, v{s0}, v{s0+1}")
        a(f"v_max3_f32 v{m}, v{s0+2}, v{s0+3}, v{m}")
        a(f"v_mov_b32 v{m2}, v{m}")
        a(f"v_permlane16_swap_b32 v{m}, v{m2}")
        a(f"v_max_f32 v{m}, v{m}, v{m2}")
        a(f"v_mul_f32 v{m}, {fbits(-cs)}, v{m}")
        a(f"v_mov_b32 v{m2}, {fbits(cs)}")
        for j in range(4):
            a(f"v_fma_f32 v{s0+j}, v{s0+j}, v{m2}, v{m}")
        for j in range(4):
            a(f"v_exp_f32 v{s0+j}, v{s0+j}")
        a(f"v_add_f32 v{l_}, v{s0}, v{s0+1}")
        a(f"v_add_f32 v{l2}, v{s0+2}, v{s0+3}")
        a(f"v_add_f32 v{l_}, v{l_}, v{l2}")
        a(f"v_mov_b32 v{l2}, v{l_}")
        a(f"v_permlane16_swap_b32 v{l_}, v{l2}")
        a(f"v_add_f32 v{l_}, v{l_}, v{l2}")
        a(f"v_rcp_f32 v{l_}, v{l_}")
        a(f"v_cndmask_b32 v{l_}, 0, v{l_}, s[44:45]")
        for j in range(4):
            a(f"v_mul_f32 v{s0+j}, v{s0+j}, v{l_}")
        a(f"v_cvt_pk_bf16_f32 v{P+2*tg}, v{s0}, v{s0+1}")
        a(f"v_cvt_pk_bf16_f32 v{P+2*tg+1}, v{s0+2}, v{s0+3}")
    a.c("B7")
    a.wait_vm(H["v", 3])
    a("s_barrier")
    stamp()
    vgemm([2, 3])
    a("s_sub_u32 s46, s2, 36")
    a("s_cmp_ge_u32 s46, 36")
    a(f"s_cbranch_scc1 {name}_nowv")
    a.begin("wv")
    fb = acc + 24
    for ks in range(6):
        for h in range(2):
            a(f"ds_read_b64_tr_b16 v[{fb+4*ks+2*h}:{fb+4*ks+2*h+1}], v{vStR} offset:{ks*1024+h*128}")
    d = tmp + 8
    for ks in range(6):
        c = "0" if ks == 0 else f"v[{d}:{d+3}]"
        a(f"v_mfma_f32_16x16x32_bf16 v[{d}:{d+3}], a[{FA(ks)}:{FA(ks)+3}], v[{fb+4*ks}:{fb+4*ks+3}], {c}")
    fold_finish(None, vFs2)
    a.end()
    a.label(f"{name}_nowv")
    vmfma([2, 3])
    a.c("B8")
    a.wait_vm(H["v", 5])
    a("s_barrier")
    stamp()
    vgemm([4, 5])
    vmfma([4, 5])
    vp = acc + 24
    for i in range(3):
        for tg in range(2):
            D = ACCV(i, tg); p = vp + (i * 2 + tg) * 2
            a(f"v_cvt_pk_bf16_f32 v{p}, v{D}, v{D+1}")
            a(f"v_cvt_pk_bf16_f32 v{p+1}, v{D+2}, v{D+3}")
    for i in range(3):
        for tg in range(2):
            p = vp + (i * 2 + tg) * 2; D = ACCV(i, tg)
            a(f"v_mfma_f32_16x16x16_bf16 v[{D}:{D+3}], v[{p}:{p+1}], v[{P+2*tg}:{P+2*tg+1}], 0")
    for i in range(3):
        for tg in range(2):
            D = ACCV(i, tg); p = vp + (i * 2 + tg) * 2
            a(f"v_cvt_pk_bf16_f32 v{p}, v{D}, v{D+1}")
            a(f"v_cvt_pk_bf16_f32 v{p+1}, v{D+2}, v{D+3}")
            a(f"ds_write_b64 v{vD[i]}, v[{p}:{p+1}] offset:{tg*6144}")
    def ogemm(kss):
        for ks in kss:
            slot = 6 + ks
            for i in range(3):
                for h in range(2):
                    trread(wf + ((ks % 2) * 3 + i) * 4, slot // 4, i, slot, h)
    def omfma(kss):
        for ks in kss:
            for i in range(3):
                for tg in range(2):
                    A_ = wf + ((ks % 2) * 3 + i) * 4; D = ACC(i, tg)
                    a(f"v_mfma_f32_16x16x32_bf16 v[{D}:{D+3}], v[{A_}:{A_+3}], v[{HF(ks,tg)}:{HF(ks,tg)+3}], v[{D}:{D+3}]")
    a.c("B9")
    a.wait_vm(H["o", 1])
    a("s_waitcnt lgkmcnt(0)")
    a("s_barrier")
    stamp()
    read_frags(hf)
    ogemm([0, 1]); omfma([0, 1])
    a.c("B10")
    a.wait_vm(H["o", 3])
    a("s_barrier")
    stamp()
    ogemm([2, 3]); omfma([2, 3])
    a.c("B11")
    a.wait_vm(H["o", 5])
    a("s_barrier")
    stamp()
    ogemm([4, 5]); omfma([4, 5])
    for i in range(3):
        for tg in range(2):
            D = ACC(i, tg); p = vp + (i * 2 + tg) * 2
            a(f"v_cvt_pk_bf16_f32 v{p}, v{D}, v{D+1}")
            a(f"v_cvt_pk_bf16_f32 v{p+1}, v{D+2}, v{D+3}")
            a(f"ds_write_b64 v{vD[i]}, v[{p}:{p+1}] offset:{tg*6144}")
    a.c("B12")
    a("s_waitcnt lgkmcnt(0)")
    a("s_barrier")
    stamp()
    for k in range(3):
        a(f"ds_read_b128 v[{xln+4*k}:{xln+4*k+3}], v{vHL} offset:{k*128}")
    a(f"s_add_u32 s{sT0}, s{sN384}, {X1_OFF}")
    a(f"s_lshr_b32 s{sT1}, s2, 3")
    a(f"s_mul_i32 s{sT1}, s{sT1}, 12288")
    a(f"s_and_b32 s{sT2}, s2, 7")
    a(f"s_lshl_b32 s{sT2}, s{sT2}, 2")
    a(f"s_add_u32 s{sT2}, s{sT2}, s{sW}")
    a(f"s_lshl_b32 s{sT2}, s{sT2}, 7")
    a(f"s_add_u32 s{sT1}, s{sT1}, s{sT2}")
    a(f"s_add_u32 s{sT1}, s{sT1}, {H1S_OFF}")
    for k in range(3):
        a(f"buffer_store_dwordx4 v[{xln+4*k}:{xln+4*k+3}], v{vXoff}, s[{sWSP}:{sWSP+3}], s{sT0} offen offset:{k*128}")
    ln_stats(a, xs, st + 2, st, tmp, tmp + 1, vOnes)
    ln_apply(a, xs, [hp + i for i in range(12)], st + 2, st, tmp)
    for k in range(3):
        a(f"buffer_store_dwordx4 v[{hp+4*k}:{hp+4*k+3}], v{vH1}, s[{sWSP}:{sWSP+3}], s{sT1} offen")
        if k < 2: a(f"s_add_u32 s{sT1}, s{sT1}, 4096")
    stamp()
    if ST:
        a("s_waitcnt vmcnt(0)")
        stamp()
        a("s_memrealtime s[98:99]")
        a("s_waitcnt lgkmcnt(0)")
        a(f"s_lshl_b32 s3, s2, 2")
        a(f"s_add_u32 s3, s3, s{sW}")
        a(f"s_lshl_b32 s3, s3, 7")
        a(f"s_add_u32 s3, s3, 0x800000")
        for i in range(nst[0]):
            a(f"v_mov_b32 v1, s{48+2*i}")
            a(f"v_mov_b32 v2, {4*i}")
            a(f"buffer_store_dword v1, v2, s[{sWSP}:{sWSP+3}], s3 offen")
        for i in range(2):
            a(f"v_mov_b32 v1, s{96+2*i}")
            a(f"v_mov_b32 v2, {4*(30+i)}")
            a(f"buffer_store_dword v1, v2, s[{sWSP}:{sWSP+3}], s3 offen")
        print("stamps", nst[0])
    a.label(f"{name}_end")
    a("s_endpgm")
    return a, R.n, 48
```

```python
from asmlib import *
from ka import X1_OFF, H1S_OFF, MT_OFF, WVOT_OFF, WS_SIZE, SRD3, srd
AUX = 147456
RING = 36864
NB = AUX + 12288
LB = NB + 512
SQ192 = 192 ** 0.5 * 1.01

def kernel_b(name, opts={}):
    a = Asm()
    ST = opts.get("stamp") == "1"
    nst = [0]
    def stamp():
        if ST:
            a(f"s_memtime s[{48+2*nst[0]}:{49+2*nst[0]}]"); nst[0] += 1
    sWS, sOUT = 4, 8
    sW, sT, sQB, sHB, sM, sT0, sT1, sT2, sRot, sGB, sOutB, sX1B, sCnt = range(12, 25)
    vL, vL16 = 1, 2
    vK = [3, 4, 5, 6]; vV = [[7, 8], [9, 10]]
    vHB = [11, 12]; vQW = 13; vQR = 14; vNW = 15; vNR = 16
    vRS = [17, 18]; vRW = 19; vAG = 20; vOB = 21; vOut = 22
    vl = [23, 24]; vri = [25, 26]
    tmp = 27
    O = 32
    S = [128, 144]; MREF = 160; P = [176, 184]
    T = 192
    XR = 224
    NV = 236
    AQ = 0; AK = 48; AV = 80; AW = 112; ASEL = 184; NA = 192
    NKB = 8; NVB = 8

    a.label(name)
    a("s_cmp_ge_u32 s2, 256")
    a(f"s_cbranch_scc1 {name}_end")
    if ST: a("s_memrealtime s[96:97]")
    stamp()
    a(f"s_load_dwordx2 s[{sOUT}:{sOUT+1}], s[0:1], 40")
    a(f"s_load_dwordx2 s[{sWS}:{sWS+1}], s[0:1], 56")
    t = T
    a(f"v_and_b32 v{vL}, 63, v0")
    a(f"v_lshrrev_b32 v{t}, 6, v0")
    a(f"v_readfirstlane_b32 s{sW}, v{t}")
    a(f"v_lshlrev_b32 v{vL16}, 4, v{vL}")
    srd(a, sWS, WS_SIZE); srd(a, sOUT, 3145728)
    a(f"s_and_b32 s{sT}, s2, 7")
    a(f"s_lshr_b32 s{sQB}, s2, 3")
    a(f"s_mul_i32 s{sHB}, s{sT}, 393216")
    a(f"s_mul_i32 s{sT0}, s{sQB}, 12288")
    a(f"s_add_u32 s{sOutB}, s{sHB}, s{sT0}")
    a(f"s_add_u32 s{sHB}, s{sHB}, {H1S_OFF}")
    a(f"s_mul_i32 s{sM}, s{sW}, {RING}")
    a(f"s_and_b32 s{sRot}, s{sQB}, 7")
    a(f"s_mul_i32 s{sGB}, s{sW}, 98304")
    a(f"s_add_u32 s{sGB}, s{sGB}, s{sHB}")
    a("s_waitcnt lgkmcnt(0)")
    stamp()
    a(f"s_mul_i32 s{sT0}, s{sW}, 3072")
    a(f"s_add_u32 m0, s{sT0}, {AUX}")
    a(f"s_add_u32 s{sT0}, s{sT0}, s{sOutB}")
    a(f"s_add_u32 s{sT0}, s{sT0}, {H1S_OFF}")
    for i in range(3):
        Hq = a(f"buffer_load_dwordx4 v{vL16}, s[{sWS}:{sWS+3}], s{sT0} offen offset:{i*1024} lds")
    def load_wfrags(off):
        a(f"s_mul_i32 s{sT0}, s{sW}, 18432")
        a(f"s_add_u32 s{sT0}, s{sT0}, {off}")
        res = []
        for idx in range(18):
            if idx and idx % 4 == 0: res.append(f"s_add_u32 s{sT0}, s{sT0}, 4096")
            res.append(f"buffer_load_dwordx4 a[{AW+4*idx}:{AW+4*idx+3}], v{vL16}, s[{sWS}:{sWS+3}], s{sT0} offen offset:{(idx%4)*1024}")
        return res
    for x in load_wfrags(MT_OFF): a(x)
    H = {}
    def tile_base(j, sreg):
        return [f"s_add_u32 s{sreg}, s{sRot}, {j}", f"s_and_b32 s{sreg}, s{sreg}, 7",
                f"s_mul_i32 s{sreg}, s{sreg}, 12288", f"s_add_u32 s{sreg}, s{sreg}, s{sGB}"]
    def dma_block(j, cb, sbase=None):
        blk = (3 * j + cb) % 9
        pre = [f"s_add_u32 m0, s{sM}, {blk*4096}", f"s_add_u32 s{sT1}, s{sT2}, {cb*4096}"]
        out = []
        for i in range(4):
            ins = f"buffer_load_dwordx4 v{vL16}, s[{sWS}:{sWS+3}], s{sT1} offen offset:{i*1024} lds"
            out.append((pre if i == 0 else []) + [ins])
        return out
    def issue_ring_prologue(record):
        for j in range(3):
            for x in tile_base(j, sT2): a(x)
            for cb in range(3):
                for grp in dma_block(j, cb):
                    for x in grp: last = a(x)
                if record: H[j, cb] = last
    issue_ring_prologue(True)
    stamp()
    q32, h, l16, g, r4, c4, f16, u0, u1, u2 = range(t, t + 10)
    a(f"v_and_b32 v{q32}, 31, v{vL}")
    a(f"v_lshrrev_b32 v{h}, 5, v{vL}")
    a(f"v_and_b32 v{l16}, 15, v{vL}")
    a(f"v_lshrrev_b32 v{g}, 4, v{vL}")
    a(f"v_bfe_u32 v{r4}, v{vL}, 2, 2")
    a(f"v_and_b32 v{c4}, 3, v{vL}")
    a(f"v_bfe_u32 v{u0}, v{vL}, 1, 1")
    a(f"v_lshl_or_b32 v{f16}, v{u0}, 2, v{r4}")
    a(f"v_lshlrev_b32 v{u1}, 7, v{l16}")
    for e in range(2):
        a(f"v_add_u32 v{u0}, {4*e}, v{g}")
        a(f"v_xor_b32 v{u0}, v{u0}, v{f16}")
        a(f"v_lshl_add_u32 v{u0}, v{u0}, 4, v{u1}")
        a(f"v_add_u32 v{vHB[e]}, {AUX}, v{u0}")
    a(f"v_lshlrev_b32 v{u1}, 7, v{q32}")
    a(f"v_add_u32 v{u1}, s{sM}, v{u1}")
    for m in range(4):
        a(f"v_add_u32 v{u0}, {2*m}, v{h}")
        a(f"v_xor_b32 v{u0}, v{u0}, v{f16}")
        a(f"v_lshl_add_u32 v{vK[m]}, v{u0}, 4, v{u1}")
    a(f"v_lshlrev_b32 v{u1}, 2, v{h}")
    a(f"v_add_u32 v{u1}, v{u1}, v{r4}")
    a(f"v_lshlrev_b32 v{u1}, 7, v{u1}")
    a(f"v_add_u32 v{u1}, s{sM}, v{u1}")
    a(f"v_and_b32 v{u2}, 1, v{c4}")
    a(f"v_lshl_add_u32 v{u1}, v{u2}, 3, v{u1}")
    a(f"v_and_b32 v{u2}, 1, v{g}")
    a(f"v_lshlrev_b32 v{u2}, 1, v{u2}")
    a(f"v_lshrrev_b32 v{u0}, 1, v{c4}")
    a(f"v_add_u32 v{u2}, v{u2}, v{u0}")
    a(f"v_lshrrev_b32 v{u0}, 1, v{r4}")
    a(f"v_lshl_or_b32 v{u0}, v{u0}, 2, v{h}")
    a(f"v_xor_b32 v{u2}, v{u2}, v{u0}")
    for e in range(2):
        for jj in range(2):
            a(f"v_xor_b32 v{u0}, {4*e ^ (2*jj)}, v{u2}")
            a(f"v_lshl_add_u32 v{u0}, v{u0}, 4, v{u1}")
            a(f"v_add_u32 v{vV[e][jj]}, {jj*1024}, v{u0}")
    a(f"s_mul_i32 s{sT0}, s{sW}, 3072")
    a(f"s_add_u32 s{sT1}, s{sT0}, {AUX}")
    a(f"v_lshl_add_u32 v{u0}, v{h}, 5, v{l16}")
    a(f"v_lshlrev_b32 v{u0}, 4, v{u0}")
    a(f"v_and_b32 v{u1}, 1, v{g}")
    a(f"v_lshl_add_u32 v{u0}, v{u1}, 3, v{u0}")
    a(f"v_add_u32 v{vQW}, s{sT1}, v{u0}")
    a(f"v_add_u32 v{vQR}, {AUX}, v{vL16}")
    a(f"v_add_u32 v{vAG}, s{sT1}, v{vL16}")
    a(f"v_add_u32 v{vRS[0]}, s{sT0}, v{vL16}")
    a(f"v_add_u32 v{vRS[1]}, {2*RING}, v{vRS[0]}")
    a(f"v_add_u32 v{vRW}, s{sM}, v{vL16}")
    a(f"s_lshl_b32 s{sT1}, s{sW}, 2")
    a(f"s_add_u32 s{sT1}, s{sT1}, {NB}")
    a(f"v_lshlrev_b32 v{u0}, 4, v{l16}")
    a(f"v_add_u32 v{vNW}, s{sT1}, v{u0}")
    a(f"v_lshlrev_b32 v{u0}, 4, v{q32}")
    a(f"v_add_u32 v{vNR}, {NB}, v{u0}")
    a(f"v_lshl_add_u32 v{u0}, v{u1}, 5, v{l16}")
    a(f"v_lshlrev_b32 v{u0}, 4, v{u0}")
    a(f"v_lshl_add_u32 v{u0}, v{h}, 10, v{u0}")
    a(f"v_add_u32 v{vOB}, {AUX}, v{u0}")
    a(f"v_mul_u32_u24 v{u0}, 384, v{l16}")
    a(f"v_lshl_add_u32 v{vOut}, v{g}, 3, v{u0}")
    a(f"v_and_b32 v{u0}, 1, v{vL}")
    a(f"v_lshlrev_b32 v{u0}, 4, v{u0}")
    a(f"v_mov_b32 v{u1}, 0x3f80")
    a(f"v_lshlrev_b32 v{u0}, v{u0}, v{u1}")
    a(f"v_bfe_u32 v{u1}, v{vL}, 2, 1")
    a(f"v_cmp_eq_u32 vcc, v{u1}, v{h}")
    a(f"v_cndmask_b32 v{u0}, 0, v{u0}, vcc")
    a(f"v_bfe_u32 v{u1}, v{vL}, 3, 1")
    a(f"v_bfe_u32 v{u2}, v{vL}, 1, 1")
    a(f"v_lshl_add_u32 v{u1}, v{u1}, 1, v{u2}")
    a(f"v_bfe_u32 v{u2}, v{vL}, 4, 1")
    a(f"v_lshl_add_u32 v{u1}, v{u2}, 2, v{u1}")
    for i in range(8):
        a(f"v_cmp_eq_u32 vcc, {i}, v{u1}")
        a(f"v_cndmask_b32 v{u2}, 0, v{u0}, vcc")
        a(f"v_accvgpr_write_b32 a{ASEL+i}, v{u2}")
    HF = lambda ks, tg: O + (ks * 2 + tg) * 4
    QD = lambda i, tg: S[0] + (i * 2 + tg) * 4
    a.wait_vm(Hq)
    a("s_barrier")
    stamp()
    for ks in range(6):
        for tg in range(2):
            r = HF(ks, tg)
            a(f"ds_read_b128 v[{r}:{r+3}], v{vHB[ks%2]} offset:{(ks//2)*4096 + tg*2048}")
    for i in range(3):
        for ks in range(6):
            for tg in range(2):
                D = QD(i, tg); c = "0" if ks == 0 else f"v[{D}:{D+3}]"
                w_ = AW + 4 * (i * 6 + ks)
                a(f"v_mfma_f32_16x16x32_bf16 v[{D}:{D+3}], a[{w_}:{w_+3}], v[{HF(ks,tg)}:{HF(ks,tg)+3}], {c}")
        if i == 0:
            a("s_barrier")
    stamp()
    for i in range(3):
        for tg in range(2):
            D = QD(i, tg); p = T + 16 + (i * 2 + tg) * 2
            a(f"v_cvt_pk_bf16_f32 v{p}, v{D}, v{D+1}")
            a(f"v_cvt_pk_bf16_f32 v{p+1}, v{D+2}, v{D+3}")
            a(f"ds_write_b64 v{vQW}, v[{p}:{p+1}] offset:{i*1024 + tg*256}")
    for tg in range(2):
        n = tmp + tg
        first = True
        for i in range(3):
            for r in range(4):
                D = QD(i, tg) + r
                if first: a(f"v_mul_f32 v{n}, v{D}, v{D}"); first = False
                else: a(f"v_fmac_f32 v{n}, v{D}, v{D}")
    for tg in range(2):
        n = tmp + tg; m = tmp + 2 + tg
        a(f"v_mov_b32 v{m}, v{n}")
        a(f"v_permlane16_swap_b32 v{n}, v{m}")
        a(f"v_add_f32 v{n}, v{n}, v{m}")
        a(f"v_mov_b32 v{m}, v{n}")
        a(f"v_permlane32_swap_b32 v{n}, v{m}")
        a(f"v_add_f32 v{n}, v{n}, v{m}")
        a(f"ds_write_b32 v{vNW}, v{n} offset:{NB - NB + tg*256}")
    a("s_waitcnt lgkmcnt(0)")
    a("s_barrier")
    stamp()
    a(f"ds_read_b128 v[{T}:{T+3}], v{vNR}")
    for ks in range(12):
        a(f"ds_read_b128 a[{AQ+4*ks}:{AQ+4*ks+3}], v{vQR} offset:{ks*1024}")
    a(f"v_add_f32 v{T}, v{T}, v{T+1}")
    a(f"v_add_f32 v{T+2}, v{T+2}, v{T+3}")
    a(f"v_add_f32 v{T}, v{T}, v{T+2}")
    a(f"v_sqrt_f32 v{T}, v{T}")
    a(f"v_mul_f32 v{T}, {fbits(SQ192)}, v{T}")
    a(f"v_mov_b32 v{T+1}, {fbits(80.0)}")
    a(f"v_cmp_nle_f32 vcc, v{T}, v{T+1}")
    a(f"v_sub_f32 v{MREF}, {fbits(64.0)}, v{T}")
    a(f"s_cbranch_vccnz {name}_fb")
    a.label(f"{name}_go")
    for i in range(1, 16): a(f"v_mov_b32 v{MREF+i}, v{MREF}")
    a(f"v_mov_b32 v{vl[0]}, 0"); a(f"v_mov_b32 v{vl[1]}, 0")
    stamp()

    kcnt = [0]; vcnt = [0]
    kreg = {}; vreg = {}
    def kread(j, ks):
        r = AK + 4 * (kcnt[0] % NKB); kcnt[0] += 1; kreg[j, ks] = r
        blk = (3 * j + ks // 4) % 9
        pre = [("waitvm", H[j, ks // 4])] if ks % 4 == 0 else []
        return pre + [f"ds_read_b128 a[{r}:{r+3}], v{vK[ks%4]} offset:{blk*4096}"]
    def vread(j, s, ct):
        r = AV + 4 * (vcnt[0] % NVB); vcnt[0] += 1; vreg[j, s, ct] = r
        blk = (3 * j + ct // 2) % 9
        return [f"ds_read_b64_tr_b16 a[{r+2*jj}:{r+2*jj+1}], v{vV[ct%2][jj]} offset:{blk*4096 + s*2048}" for jj in range(2)]
    def smfma(j, ks):
        D = S[j % 2]; r = kreg[j, ks]
        c = f"v[{MREF}:{MREF+15}]" if ks == 0 else f"v[{D}:{D+15}]"
        return f"v_mfma_f32_32x32x16_bf16 v[{D}:{D+15}], a[{r}:{r+3}], a[{AQ+4*ks}:{AQ+4*ks+3}], {c}"
    def pvmfma(j, s, ct):
        D = O + 16 * ct; r = vreg[j, s, ct]; p = P[j % 2] + 4 * s
        c = "0" if (j == 0 and s == 0) else f"v[{D}:{D+15}]"
        return f"v_mfma_f32_32x32x16_bf16 v[{D}:{D+15}], a[{r}:{r+3}], v[{p}:{p+3}], {c}"
    def softmax_items(j):
        D = S[j % 2]; p = P[j % 2]; items = []
        for i in range(16):
            it = [f"v_exp_f32 v{D+i}, v{D+i}"]
            if i >= 1: it.append(f"v_add_f32 v{vl[(i-1)%2]}, v{vl[(i-1)%2]}, v{D+i-1}")
            if i >= 2 and i % 2 == 0: it.append(f"v_cvt_pk_bf16_f32 v{p+(i-2)//2}, v{D+i-2}, v{D+i-1}")
            items.append(it)
        tail = [f"v_add_f32 v{vl[1]}, v{vl[1]}, v{D+15}", f"v_cvt_pk_bf16_f32 v{p+7}, v{D+14}, v{D+15}"]
        return items, tail
    def emit(lst):
        for x in lst:
            if isinstance(x, tuple): a.wait_vm(x[1])
            else: a(x)
    KL = 4
    VL = 4
    seq = [("S", 0, ks) for ks in range(12)]
    for j in range(8):
        if j < 7: seq += [("S", j + 1, ks) for ks in range(12)]
        seq += [("PV", j, s, ct) for s in range(2) for ct in range(6)]
    NG = len(seq)
    fill = [[] for _ in range(NG + 64)]
    pos = {m: i for i, m in enumerate(seq)}
    pre_reads = []
    order = []
    for i, m in enumerate(seq):
        lead = KL if m[0] == "S" else VL
        order.append((i - lead - 1, i, m))
    reads_at = {}
    for at, i, m in order:
        reads_at.setdefault(max(at, -1), []).append(m)
    sm_at = {}
    def place_softmax(j, first_gap, step=1.0):
        items, tail = softmax_items(j)
        gi = first_gap
        for i, it in enumerate(items):
            gidx = int(first_gap + i * step)
            sm_at.setdefault(gidx, []).extend(it)
        sm_at.setdefault(int(first_gap + 16 * step), []).extend(tail)
    for j in range(7):
        g0 = pos["S", j + 1, 0]
        place_softmax(j, g0 + (2 if j == 0 else 0), step=(14.0/16 if j in (0, 6) else 1.0))
    place_softmax(7, pos["PV", 6, 0, 0] + 3, step=14.0/16)
    dma_at = {}
    for j in range(5):
        g0 = pos["PV", j, 1, 1]
        gi = g0 + 1
        for cb in range(3):
            assert gi > pos["PV", j, 1, 2 * cb + 1] or True
            gi = max(gi, pos["PV", j, 1, 2 * cb + 1] + 1)
            for k, grp in enumerate(dma_block(j + 3, cb)):
                pre = tile_base(j + 3, sT2) if (cb == 0 and k == 0) else []
                dma_at.setdefault(gi, []).append((pre + grp, (j + 3, cb) if k == 3 else None))
                gi += 1
    late = []
    wl = load_wfrags
    late_start = pos["PV", 5, 0, 0]
    def do_reads(ms):
        for m in ms:
            if m[0] == "S": emit(kread(m[1], m[2]))
            else: emit(vread(m[1], m[2], m[3]))
    do_reads(reads_at.get(-1, []))
    late_list = None
    epi_units = []
    for i, m in enumerate(seq):
        a(smfma(m[1], m[2]) if m[0] == "S" else pvmfma(m[1], m[2], m[3]))
        if m[0] == "S" and m[2] == 0 or m == ("PV", 7, 0, 0): stamp()
        do_reads(reads_at.get(i, []))
        emit(sm_at.get(i, []))
        for grp, key in dma_at.get(i, []):
            for x in grp: last = a(x)
            if key: H[key] = last
        if i == late_start:
            txt = []
            txt.append([f"s_mul_i32 s{sT0}, s{sW}, 18432", f"s_add_u32 s{sT0}, s{sT0}, {WVOT_OFF}"])
            for idx in range(18):
                grp = []
                if idx and idx % 4 == 0: grp.append(f"s_add_u32 s{sT0}, s{sT0}, 4096")
                grp.append(f"buffer_load_dwordx4 a[{AW+4*idx}:{AW+4*idx+3}], v{vL16}, s[{sWS}:{sWS+3}], s{sT0} offen offset:{(idx%4)*1024}")
                txt.append(grp)
            txt.append([f"s_mul_i32 s{sT1}, s{sW}, 96", f"s_add_u32 s{sOutB}, s{sOutB}, s{sT1}", f"s_add_u32 s{sX1B}, s{sOutB}, {X1_OFF}",
                        f"s_add_u32 s{sT1}, s{sX1B}, 6144"])
            for tg in range(2):
                for ii in range(3):
                    r = XR + (ii * 2 + tg) * 2
                    txt.append([f"buffer_load_dwordx2 v[{r}:{r+1}], v{vOut}, s[{sWS}:{sWS+3}], s{sX1B if tg == 0 else sT1} offen offset:{ii*32}"])
            late_list = txt
        if late_list:
            emit(late_list.pop(0))
        if m[0] == "PV" and m[1] == 7 and m[2] == 1 and m[3] >= 2:
            epi_units.append(m[3] - 2)
            ct = m[3] - 2
            for s in range(2):
                u = 2 * ct + s; tt = T + (u % 4) * 4
                for k in range(4):
                    a(f"v_cvt_pk_bf16_f32 v{tt+k}, v{O+16*ct+8*s+2*k}, v{O+16*ct+8*s+2*k+1}")
                a(f"ds_write_b128 v{vRW}, v[{tt}:{tt+3}] offset:{u*1024}")
    while late_list: emit(late_list.pop(0))
    for gi in range(NG, NG + 64):
        emit(sm_at.get(gi, []))
    stamp()
    a(f"v_add_f32 v{vl[0]}, v{vl[0]}, v{vl[1]}")
    a(f"v_mov_b32 v{vl[1]}, v{vl[0]}")
    a(f"v_permlane32_swap_b32 v{vl[0]}, v{vl[1]}")
    a(f"v_add_f32 v{vl[0]}, v{vl[0]}, v{vl[1]}")
    a(f"s_lshl_b32 s{sT0}, s{sW}, 2")
    a(f"v_add_u32 v{tmp}, s{sT0}, v{vNR}")
    a(f"ds_write_b32 v{tmp}, v{vl[0]} offset:512")
    for ct in range(6):
        if ct in epi_units: continue
        for s in range(2):
            u = 2 * ct + s; tt = T + (u % 4) * 4
            for k in range(4):
                a(f"v_cvt_pk_bf16_f32 v{tt+k}, v{O+16*ct+8*s+2*k}, v{O+16*ct+8*s+2*k+1}")
            a(f"ds_write_b128 v{vRW}, v[{tt}:{tt+3}] offset:{u*1024}")
    a("s_waitcnt lgkmcnt(0)")
    a("s_barrier")
    stamp()
    RF = lambda i, src: AK + (i * 4 + src) * 4
    for i in range(3):
        for src in range(4):
            a(f"ds_read_b128 a[{RF(i,src)}:{RF(i,src)+3}], v{vRS[src//2]} offset:{(src%2)*RING + i*1024}")
    a(f"v_and_b32 v{tmp}, 15, v{vL}")
    a(f"v_lshlrev_b32 v{tmp}, 4, v{tmp}")
    a(f"v_add_u32 v{tmp}, {LB}, v{tmp}")
    a(f"ds_read_b128 v[{T+16}:{T+19}], v{tmp}")
    a(f"ds_read_b128 v[{T+20}:{T+23}], v{tmp} offset:256")
    for i in range(3):
        D = S[0] if i < 2 else S[1]
        sel = ASEL + (4 if i == 1 else 0)
        for src in range(4):
            c = "0" if (src == 0 and i != 1) else f"v[{D}:{D+15}]"
            a(f"v_mfma_f32_32x32x16_bf16 v[{D}:{D+15}], a[{sel}:{sel+3}], a[{RF(i,src)}:{RF(i,src)+3}], {c}")
    for tg in range(2):
        r = T + 16 + 4 * tg
        a(f"v_add_f32 v{r}, v{r}, v{r+1}")
        a(f"v_add_f32 v{r+2}, v{r+2}, v{r+3}")
        a(f"v_add_f32 v{r}, v{r}, v{r+2}")
        a(f"v_rcp_f32 v{vri[tg]}, v{r}")
    for i in range(3):
        src = (S[0] + 8 * i) if i < 2 else S[1]
        tt = T + 4 * i
        for k in range(4):
            a(f"v_cvt_pk_bf16_f32 v{tt+k}, v{src+2*k}, v{src+2*k+1}")
        a(f"ds_write_b128 v{vAG}, v[{tt}:{tt+3}] offset:{i*1024}")
    a("s_waitcnt lgkmcnt(0)")
    a("s_barrier")
    stamp()
    OB = lambda ct, tg: AQ + (ct * 2 + tg) * 4
    for ct in range(6):
        for tg in range(2):
            a(f"ds_read_b128 a[{OB(ct,tg)}:{OB(ct,tg)+3}], v{vOB} offset:{ct*2048 + tg*256}")
    OD = lambda i, tg: O + (i * 2 + tg) * 4
    for ct in range(6):
        for i in range(3):
            for tg in range(2):
                D = OD(i, tg); c = "0" if ct == 0 else f"v[{D}:{D+3}]"
                w_ = AW + 4 * (i * 6 + ct)
                a(f"v_mfma_f32_16x16x32_bf16 v[{D}:{D+3}], a[{w_}:{w_+3}], a[{OB(ct,tg)}:{OB(ct,tg)+3}], {c}")
    stamp()
    a(f"s_add_u32 s{sT1}, s{sOutB}, 6144")
    for tg in range(2):
        for i in range(3):
            D = OD(i, tg); x = XR + (i * 2 + tg) * 2; tt = T + (i * 2 + tg) * 4
            a(f"v_lshlrev_b32 v{tt}, 16, v{x}")
            a(f"v_and_b32 v{tt+1}, 0xffff0000, v{x}")
            a(f"v_lshlrev_b32 v{tt+2}, 16, v{x+1}")
            a(f"v_and_b32 v{tt+3}, 0xffff0000, v{x+1}")
            for r in range(4):
                a(f"v_fma_f32 v{tt+r}, v{D+r}, v{vri[tg]}, v{tt+r}")
            a(f"v_cvt_pk_bf16_f32 v{tt}, v{tt}, v{tt+1}")
            a(f"v_cvt_pk_bf16_f32 v{tt+1}, v{tt+2}, v{tt+3}")
            a(f"buffer_store_dwordx2 v[{tt}:{tt+1}], v{vOut}, s[{sOUT}:{sOUT+3}], s{sOutB if tg == 0 else sT1} offen offset:{i*32}")
    stamp()
    if ST:
        a("s_waitcnt vmcnt(0)")
        stamp()
        a("s_memrealtime s[98:99]")
        a("s_waitcnt lgkmcnt(0)")
        a(f"s_lshl_b32 s3, s2, 2")
        a(f"s_add_u32 s3, s3, s{sW}")
        a(f"s_lshl_b32 s3, s3, 7")
        a(f"s_add_u32 s3, s3, 0x900000")
        for i in range(nst[0]):
            a(f"v_mov_b32 v1, s{48+2*i}")
            a(f"v_mov_b32 v2, {4*i}")
            a(f"buffer_store_dword v1, v2, s[{sWS}:{sWS+3}], s3 offen")
        for i in range(2):
            a(f"v_mov_b32 v1, s{96+2*i}")
            a(f"v_mov_b32 v2, {4*(30+i)}")
            a(f"buffer_store_dword v1, v2, s[{sWS}:{sWS+3}], s3 offen")
        print("B stamps", nst[0])
    a("s_endpgm")
    a.label(f"{name}_fb")
    a.reset()
    a("s_waitcnt vmcnt(0) lgkmcnt(0)")
    a(f"v_mov_b32 v{tmp}, {fbits(-3.0e38)}")
    a(f"s_mov_b32 s{sCnt}, 0")
    a.label(f"{name}_fbl")
    a.reset()
    a(f"s_mul_i32 s{sT2}, s{sCnt}, 12288")
    a(f"s_add_u32 s{sT2}, s{sT2}, s{sGB}")
    for cb in range(3):
        for grp in dma_block(0, cb):
            for x in grp: a(x)
    a("s_waitcnt vmcnt(0)")
    D = S[0]
    for ks in range(12):
        r = AK + 4 * (ks % 8)
        a(f"ds_read_b128 a[{r}:{r+3}], v{vK[ks%4]} offset:{(ks//4)*4096}")
        c = "0" if ks == 0 else f"v[{D}:{D+15}]"
        a(f"v_mfma_f32_32x32x16_bf16 v[{D}:{D+15}], a[{r}:{r+3}], a[{AQ+4*ks}:{AQ+4*ks+3}], {c}")
    for i in range(0, 16, 2):
        a(f"v_max3_f32 v{tmp}, v{D+i}, v{D+i+1}, v{tmp}")
    a(f"s_add_u32 s{sCnt}, s{sCnt}, 1")
    a(f"s_cmp_lt_u32 s{sCnt}, 8")
    a(f"s_cbranch_scc1 {name}_fbl")
    a.reset()
    a(f"v_mov_b32 v{tmp+1}, v{tmp}")
    a("s_nop 1")
    a(f"v_permlane32_swap_b32 v{tmp}, v{tmp+1}")
    a(f"v_max_f32 v{tmp}, v{tmp}, v{tmp+1}")
    a(f"s_lshl_b32 s{sT0}, s{sW}, 2")
    a(f"v_add_u32 v{tmp+1}, s{sT0}, v{vNR}")
    a(f"ds_write_b32 v{tmp+1}, v{tmp} offset:1024")
    a("s_waitcnt lgkmcnt(0)")
    a("s_barrier")
    a(f"ds_read_b128 v[{T}:{T+3}], v{vNR} offset:1024")
    a(f"v_max_f32 v{T}, v{T}, v{T+1}")
    a(f"v_max3_f32 v{T}, v{T+2}, v{T+3}, v{T}")
    a(f"v_sub_f32 v{MREF}, 0, v{T}")
    issue_ring_prologue(False)
    a("s_nop 4")
    a(f"s_branch {name}_go")
    a.label(f"{name}_end")
    a("s_endpgm")
    return a, NV, NA
```

```python
import sys, os
sys.path.insert(0, os.path.dirname(os.path.abspath(__file__)))
from asmlib import *
import ka
try:
    import kb
except ImportError:
    kb = None

class RawLine(Ins):
    def __init__(s, text):
        Ins.__init__(s); s.text = text; s.comment = True; s.ws = 0
HDR = """; Video TimeSformer block (temporal attn + spatial attn), gfx950. Generated by gen/gen.py
{launch}
.amdgcn_target "amdgcn-amd-amdhsa--gfx950"
.text
"""
def kdesc(name, nv, na, nsgpr=102):
    acc = (nv + 3) // 4 * 4
    if na: acc = max(acc, 4)
    tot = acc + na
    return f""".amdhsa_kernel {name}
  .amdhsa_next_free_vgpr {tot}
  .amdhsa_next_free_sgpr {nsgpr}
  .amdhsa_accum_offset {acc}
  .amdhsa_group_segment_fixed_size 0
  .amdhsa_kernarg_size 64
  .amdhsa_user_sgpr_count 2
  .amdhsa_user_sgpr_kernarg_segment_ptr 1
  .amdhsa_system_sgpr_workgroup_id_x 1
.end_amdhsa_kernel
"""
def build(out, kernels):
    launch = "\n".join(f"; @launch kernel={k[0]} grid=({k[4]},1,1) block=({k[5]},1,1) lds={k[6]}" for k in kernels)
    txt = HDR.format(launch=launch)
    seen = set()
    for name, a, nv, na, grid, block, lds in kernels:
        if name in seen: continue
        seen.add(name)
        txt += f".globl {name}\n.p2align 8\n.type {name},@function\n"
        txt += a.finalize()
    txt += '.section .rodata,"a"\n'
    seen = set()
    for name, a, nv, na, grid, block, lds in kernels:
        if name in seen: continue
        seen.add(name)
        txt += ".p2align 6\n" + kdesc(name, nv, na)
    open(out, "w").write(txt)
    return txt

if __name__ == "__main__":
    out = sys.argv[1] if len(sys.argv) > 1 else "standalone__video_timesformer__vision.s"
    opts = dict(x.split("=") for x in sys.argv[2:])
    MAIN = "standalone__video_timesformer__vision_kernel"
    K = {}
    lst = opts.get("list", "A,B" if opts.get("nob") != "1" else "A").split(",")
    import importlib
    if "A" in lst:
        kam = importlib.import_module(opts.get("ka", "ka"))
        a, nv, na = kam.kernel_a(MAIN, opts)
        K["A"] = (MAIN, a, nv, na, 256, 256, 163840)
    if "B" in lst:
        kbm = importlib.import_module(opts.get("kb", "kb"))
        b, nv, na = kbm.kernel_b("ts_b_kernel", opts)
        K["B"] = ("ts_b_kernel", b, nv, na, 256, 256, 163840)
    e = Asm(); e.label("ts_e_kernel"); e("s_endpgm")
    K["E"] = ("ts_e_kernel", e, 8, 0, 1, 64, 0)
    K["F"] = ("ts_e_kernel", e, 8, 0, 256, 256, 0)
    K["G"] = ("ts_e_kernel", e, 8, 0, 256, 256, 163840)
    def jump_kernel(name, n, stride):
        e = Asm(); e.label(name)
        for i in range(n):
            e(f"s_branch {name}_{i}")
            e.I(f".fill {stride//4-1}, 4, 0xbf800000") if False else None
            e.ins.append(RawLine(f".fill {stride//4-1}, 4, 0xbf800000"))
            e.label(f"{name}_{i}")
        e("s_endpgm"); return e
    def line_kernel(name, n, loop):
        e = Asm(); e.label(name)
        e("s_mov_b32 s4, 0")
        e.label(name + "_l")
        for i in range(n):
            e(f"v_mov_b32 v{1 + i % 7}, 0x12345678")
        e("s_add_u32 s4, s4, 1"); e(f"s_cmp_lt_u32 s4, {loop}"); e(f"s_cbranch_scc1 {name}_l")
        e("s_endpgm"); return e
    K["J1"] = ("ts_j1_kernel", jump_kernel("ts_j1_kernel", 100, 64), 8, 0, 256, 256, 0)
    K["J2"] = ("ts_j2_kernel", jump_kernel("ts_j2_kernel", 100, 256), 8, 0, 256, 256, 0)
    K["L1"] = ("ts_l1_kernel", line_kernel("ts_l1_kernel", 1600, 1), 8, 0, 256, 256, 0)
    K["LL"] = ("ts_ll_kernel", line_kernel("ts_ll_kernel", 100, 16), 8, 0, 256, 256, 0)
    build(out, [K[x] for x in lst])
    print("wrote", out)
```
